```python
import torch

def _softmax(x, axis=-1):
    return torch.softmax(x, dim=axis)
def _gelu(x):
    return torch.nn.functional.gelu(x, approximate="tanh")
def _silu(x):
    return torch.nn.functional.silu(x)
def _sigmoid(x):
    return torch.sigmoid(x)
def _layernorm(x, axis=-1, eps=1e-5):
    m = x.mean(dim=axis, keepdim=True)
    v = x.var(dim=axis, keepdim=True, unbiased=False)
    return (x - m) / torch.sqrt(v + eps)
def _scatter_add(tgt, idx, src, axis=0):
    return tgt.clone().index_add_(axis, idx, src)
def _segment_sum(src, seg, n):
    out = torch.zeros((n,) + src.shape[1:], dtype=src.dtype)
    return out.index_add_(0, seg, src)
def _pad(x, pw):
    flat = tuple(v for pair in reversed(pw) for v in pair)
    return torch.nn.functional.pad(x, flat)

kernel_name = 'standalone__detection_seg_fpn_lateral__vision'

def setup_inputs():

    _w = (lambda a: (lambda t: t.to(torch.bfloat16) if t.is_floating_point() else t)(torch.as_tensor(a)))
    H = W = (384 // 2) * 2
    C = 96
    k = 3
    return {
        "c_fine": _w((lambda *s: torch.randn(*s, dtype=torch.bfloat16) * 0.05)(1, H, W, C)),
        "p_coarse": _w((lambda *s: torch.randn(*s, dtype=torch.bfloat16) * 0.05)(1, H // 2, W // 2, C)),
        "w_lat": _w((lambda *s: torch.randn(*s, dtype=torch.bfloat16) * 0.05)(C, C)),
        "w_out": _w((lambda *s: torch.randn(*s, dtype=torch.bfloat16) * 0.05)(k, k, C, C)),
    }

def reference(c_fine, p_coarse, w_lat, w_out):
    B, H, W, C = c_fine.shape
    k = 3
    lat = torch.einsum("bhwc,cd->bhwd", c_fine, w_lat)
    up = (lambda x, n, axis: torch.repeat_interleave(x, n, dim=axis))((lambda x, n, axis: torch.repeat_interleave(x, n, dim=axis))(p_coarse, 2, axis=1), 2, axis=2)
    m = lat + up
    pad = k // 2
    mp = _pad(m, ((0, 0), (pad, pad), (pad, pad), (0, 0)))
    o = None
    for di in range(k):
        for dj in range(k):
            t = torch.einsum("bhwc,cd->bhwd", mp[:, di:di + H, dj:dj + W, :], w_out[di, dj])
            o = t if o is None else o + t
    return o
```

```python
import re


def vr(base, n=1, f="v"):
    return [f"{f}{base + i}" for i in range(n)]


def rng(base, n=1, f="v"):
    if n == 1:
        return f"{f}{base}"
    return f"{f}[{base}:{base + n - 1}]"


class I:
    __slots__ = ("text", "kind", "rd", "wr", "tag", "waitfor", "need_vm", "need_lgkm", "nops", "srcc",
                 "force_vm", "force_lgkm", "label", "wide_store")

    def __init__(self, text, kind, rd=(), wr=(), tag=None, srcc=(), wide_store=False):
        self.text = text
        self.kind = kind
        self.rd = tuple(rd)
        self.wr = tuple(wr)
        self.tag = tag
        self.waitfor = None
        self.need_vm = None
        self.need_lgkm = None
        self.nops = 0
        self.srcc = tuple(srcc)
        self.force_vm = None
        self.force_lgkm = None
        self.wide_store = wide_store


class Block:
    def __init__(self, name):
        self.name = name
        self.ins = []

    def add(self, i):
        self.ins.append(i)
        return i

    def extend(self, l):
        for i in l:
            self.ins.append(i)


def simulate(trace):
    lds_q = []
    vm_q = []
    hist = []
    for ins in trace:
        if ins.kind == "label":
            continue
        touched = set(ins.rd) | set(ins.wr)
        nl = None
        for k, d in enumerate(lds_q):
            if d & touched:
                n = len(lds_q) - 1 - k
                nl = n if nl is None else min(nl, n)
        nv = None
        for k, (d, tg) in enumerate(vm_q):
            hit = bool(d & touched)
            if ins.waitfor and tg in ins.waitfor:
                hit = True
            if hit:
                n = len(vm_q) - 1 - k
                nv = n if nv is None else min(nv, n)
        if ins.force_lgkm is not None:
            nl = ins.force_lgkm if nl is None else min(nl, ins.force_lgkm)
        if ins.force_vm is not None:
            nv = ins.force_vm if nv is None else min(nv, ins.force_vm)
        if nl is not None:
            if nl < len(lds_q):
                lds_q = lds_q[len(lds_q) - nl:] if nl > 0 else []
            ins.need_lgkm = nl if ins.need_lgkm is None else min(ins.need_lgkm, nl)
        if nv is not None:
            if nv < len(vm_q):
                vm_q = vm_q[len(vm_q) - nv:] if nv > 0 else []
            ins.need_vm = nv if ins.need_vm is None else min(ins.need_vm, nv)
        need = 0
        dist = 0
        for p in reversed(hist):
            req = 0
            pw = set(p.wr)
            if p.kind == "valu":
                if ins.kind == "mfma" and pw & set(ins.rd):
                    req = max(req, 2)
                sw = {r for r in pw if r[0] == "s" or r == "vcc"}
                if sw & set(ins.rd):
                    if ins.kind == "valu":
                        req = max(req, 2)
                    if ins.kind in ("vld", "vst", "dma"):
                        req = max(req, 5)
                if "readfirstlane" in ins.text and pw & set(ins.rd):
                    req = max(req, 1)
            if p.kind == "mfma":
                if ins.kind != "mfma" and pw & touched:
                    req = max(req, 8)
                if ins.kind == "mfma":
                    ab = set(ins.rd) - set(ins.srcc)
                    if pw & ab:
                        req = max(req, 8)
                    if pw & set(ins.srcc) and set(ins.srcc) != pw:
                        req = max(req, 6)
                if ins.kind == "valu" and set(p.srcc) & set(ins.wr):
                    req = max(req, 3)
            if p.kind == "salu" and "m0" in pw and ins.kind == "dma":
                req = max(req, 1)
            if p.wide_store and set(p.rd) & set(ins.wr):
                req = max(req, 2)
            if req > dist:
                need = max(need, req - dist)
            dist += 1 + 0
            if dist > 10:
                break
        ins.nops = max(ins.nops, need)
        for _ in range(ins.nops):
            hist.append(I("s_nop", "other"))
        if ins.text:
            hist.append(ins)
        if len(hist) > 24:
            hist = hist[-24:]
        if ins.kind in ("dsr", "dsw"):
            lds_q.append(set(ins.wr))
        elif ins.kind in ("vld", "vst", "dma"):
            vm_q.append((set(ins.wr), ins.tag))
        assert len(vm_q) < 63, "vmcnt overflow"
        assert len(lds_q) <= 15 + 100


def render(blocks):
    out = []
    for b in blocks:
        out.append(f"; ---- {b.name}")
        for ins in b.ins:
            if ins.kind == "label":
                out.append(ins.text)
                continue
            w = []
            if ins.need_vm is not None:
                w.append(f"vmcnt({min(ins.need_vm, 63)})")
            if ins.need_lgkm is not None:
                w.append(f"lgkmcnt({min(ins.need_lgkm, 15)})")
            if w:
                out.append("    s_waitcnt " + " ".join(w))
            n = ins.nops
            while n > 0:
                k = min(n, 16)
                out.append(f"    s_nop {k - 1}")
                n -= k
            if ins.text:
                out.append("    " + ins.text)
    return "\n".join(out)


def valu(text, rd, wr):
    return I(text, "valu", rd, wr)


def salu(text, rd=(), wr=()):
    return I(text, "salu", rd, wr)


def label(name):
    return I(name + ":", "label")


def mfma(d, a, b, c, af="v", first=False):
    ctext = "0" if first else rng(c, 4)
    t = f"v_mfma_f32_16x16x32_bf16 {rng(d, 4)}, {rng(a, 4, af)}, {rng(b, 4)}, {ctext}"
    rd = vr(a, 4, af) + vr(b, 4) + ([] if first else vr(c, 4))
    return I(t, "mfma", rd, vr(d, 4), srcc=([] if first else vr(c, 4)))


def ds_read_b128(d, addr, off, f="v"):
    return I(f"ds_read_b128 {rng(d, 4, f)}, v{addr} offset:{off}", "dsr", [f"v{addr}"], vr(d, 4, f))


def ds_read_tr(d, addr, off, f="v"):
    return I(f"ds_read_b64_tr_b16 {rng(d, 2, f)}, v{addr} offset:{off}", "dsr", [f"v{addr}"], vr(d, 2, f))


def ds_write_b128(addr, s, off):
    return I(f"ds_write_b128 v{addr}, {rng(s, 4)} offset:{off}", "dsw", [f"v{addr}"] + vr(s, 4), [])


def buf_load4(d, voff, srd, soff, off, tag=None):
    so = f"s{soff}" if isinstance(soff, int) else soff
    rd = [f"v{voff}"] + vr(srd, 4, "s") + ([f"s{soff}"] if isinstance(soff, int) else [])
    o = f" offset:{off}" if off else ""
    return I(f"buffer_load_dwordx4 {rng(d, 4)}, v{voff}, {rng(srd, 4, 's')}, {so} offen{o}", "vld", rd, vr(d, 4), tag)


def buf_store(n, s, voff, srd, soff, off=0):
    so = f"s{soff}" if isinstance(soff, int) else soff
    rd = [f"v{voff}"] + vr(s, n) + vr(srd, 4, "s") + ([f"s{soff}"] if isinstance(soff, int) else [])
    o = f" offset:{off}" if off else ""
    nm = {1: "dword", 2: "dwordx2", 3: "dwordx3", 4: "dwordx4"}[n]
    return I(f"buffer_store_{nm} {rng(s, n)}, v{voff}, {rng(srd, 4, 's')}, {so} offen{o}", "vst", rd, [],
             wide_store=(n >= 3))


def dma4(voff, srd, soff, off, tag):
    rd = [f"v{voff}", "m0", f"s{soff}"] + vr(srd, 4, "s")
    o = f" offset:{off}" if off else ""
    return I(f"buffer_load_dwordx4 v{voff}, {rng(srd, 4, 's')}, s{soff} offen{o} lds", "dma", rd, [], tag)


def barrier(lgkm0=True, waitfor=None):
    i = I("s_barrier", "bar")
    if lgkm0:
        i.force_lgkm = 0
    i.waitfor = waitfor
    return i


def waitfor(tags=None, lgkm=None, vm=None):
    i = I("", "other")
    i.waitfor = tags
    i.force_lgkm = lgkm
    i.force_vm = vm
    return i
```

```python
import sys
from asmlib import *

NAME = "standalone__detection_seg_fpn_lateral__vision_kernel"

ROWB = 4800
HALF = 67328
WL_AREA = 2 * HALF
DUMMY = WL_AREA + 18432
LDS_BYTES = 163840
BUF = [6 * ROWB, 6 * ROWB + 18432, HALF + 6 * ROWB, HALF + 6 * ROWB + 18432]

V_L16 = 1
V_Q16 = 2
V_MW = 3
V_BB = 4
V_WL = 5
V_OUTA = 6
V_OUTB = 7
V_LWA = 8
V_LWB = 9
V_LN16 = 10
V_T0 = 11
V_LWC = 12
V_LWD = 13
V_TA = 14
V_TB = 15
RING = 16
NRING = 8
ACC = [48, 60]
LACC = [72, 96]
CFA, UPA, CFB, UPB = 120, 132, 144, 156
WV = 168
PK = 236
TMP = 242

S_CF, S_PC, S_WL, S_WO, S_OUT = 4, 8, 12, 16, 20
S_W, S_H, S_E, S_X0M, S_Y0M, S_OROW, S_G, S_CNT = 24, 25, 26, 27, 28, 29, 30, 31
S_W4608, S_T0, S_T1, S_DSRC, S_O1, S_O2 = 33, 34, 35, 46, 47, 52


def wfrag(tap, s, T):
    f = (tap * 3 + s) * 3 + T
    if f < 64:
        return ("a", 4 * f)
    return ("v", WV + 4 * (f - 64))


def lateral_addr(gsrc, cf, up, vlw, tag, tmp=TMP):
    p, rho, kap, y, x, oc, ou, t = [tmp + i for i in range(8)]
    L = []
    A = L.append
    A(salu(f"s_lshl_b32 s{S_T0}, s{gsrc}, 4", [f"s{gsrc}"], [f"s{S_T0}"]))
    A(valu(f"v_add_u32 v{p}, s{S_T0}, v{V_L16}", [f"s{S_T0}", f"v{V_L16}"], [f"v{p}"]))
    A(valu(f"v_mul_u32_u24 v{rho}, 1311, v{p}", [f"v{p}"], [f"v{rho}"]))
    A(valu(f"v_lshrrev_b32 v{rho}, 16, v{rho}", [f"v{rho}"], [f"v{rho}"]))
    A(valu(f"v_mul_u32_u24 v{t}, 50, v{rho}", [f"v{rho}"], [f"v{t}"]))
    A(valu(f"v_sub_u32 v{kap}, v{p}, v{t}", [f"v{p}", f"v{t}"], [f"v{kap}"]))
    A(valu(f"v_add_u32 v{y}, s{S_Y0M}, v{rho}", [f"s{S_Y0M}", f"v{rho}"], [f"v{y}"]))
    A(valu(f"v_add_u32 v{x}, s{S_X0M}, v{kap}", [f"s{S_X0M}", f"v{kap}"], [f"v{x}"]))
    A(valu(f"v_cmp_gt_u32 vcc, 0x180, v{y}", [f"v{y}"], ["vcc"]))
    A(valu(f"v_cmp_gt_u32 s[48:49], s{S_O1 + 6}, v{x}", [f"v{x}", f"s{S_O1 + 6}"], ["s48", "s49"]))
    A(valu(f"v_cmp_gt_u32 s[50:51], s{S_O1 + 7}, v{p}", [f"v{p}", f"s{S_O1 + 7}"], ["s50", "s51"]))
    A(valu(f"v_mul_u32_u24 v{oc}, 0x180, v{y}", [f"v{y}"], [f"v{oc}"]))
    A(valu(f"v_add_u32 v{oc}, v{oc}, v{x}", [f"v{oc}", f"v{x}"], [f"v{oc}"]))
    A(valu(f"v_mul_u32_u24 v{oc}, 0xc0, v{oc}", [f"v{oc}"], [f"v{oc}"]))
    A(valu(f"v_add_u32 v{oc}, v{oc}, v{V_Q16}", [f"v{oc}", f"v{V_Q16}"], [f"v{oc}"]))
    A(salu("s_and_b64 vcc, vcc, s[48:49]", ["vcc", "s48", "s49"], ["vcc"]))
    A(salu("s_and_b64 vcc, vcc, s[50:51]", ["vcc", "s50", "s51"], ["vcc"]))
    A(valu(f"v_lshrrev_b32 v{y}, 1, v{y}", [f"v{y}"], [f"v{y}"]))
    A(valu(f"v_lshrrev_b32 v{x}, 1, v{x}", [f"v{x}"], [f"v{x}"]))
    A(valu(f"v_mul_u32_u24 v{ou}, 0xc0, v{y}", [f"v{y}"], [f"v{ou}"]))
    A(valu(f"v_add_u32 v{ou}, v{ou}, v{x}", [f"v{ou}", f"v{x}"], [f"v{ou}"]))
    A(valu(f"v_mul_u32_u24 v{ou}, 0xc0, v{ou}", [f"v{ou}"], [f"v{ou}"]))
    A(valu(f"v_add_u32 v{ou}, v{ou}, v{V_Q16}", [f"v{ou}", f"v{V_Q16}"], [f"v{ou}"]))
    A(valu(f"v_mov_b32 v{t}, 0x80000000", [], [f"v{t}"]))
    A(valu(f"v_cndmask_b32 v{oc}, v{t}, v{oc}, vcc", [f"v{t}", f"v{oc}", "vcc"], [f"v{oc}"]))
    A(valu(f"v_cndmask_b32 v{ou}, v{t}, v{ou}, vcc", [f"v{t}", f"v{ou}", "vcc"], [f"v{ou}"]))
    A(valu(f"v_mul_u32_u24 v{rho}, 0x12c0, v{rho}", [f"v{rho}"], [f"v{rho}"]))
    A(valu(f"v_lshl_add_u32 v{rho}, v{kap}, 4, v{rho}", [f"v{rho}", f"v{kap}"], [f"v{rho}"]))
    A(valu(f"v_add_u32 v{rho}, v{rho}, v{V_MW}", [f"v{rho}", f"v{V_MW}"], [f"v{rho}"]))
    A(valu(f"v_mov_b32 v{t}, {DUMMY}", [], [f"v{t}"]))
    A(valu(f"v_cndmask_b32 v{vlw}, v{t}, v{rho}, s[50:51]", [f"v{t}", f"v{rho}", "s50", "s51"], [f"v{vlw}"]))
    for s in range(3):
        A(buf_load4(cf + 4 * s, oc, S_CF, "0", 64 * s, tag))
    for a in range(3):
        A(buf_load4(up + 4 * a, ou, S_PC, "0", 64 * a, tag))
    return L


def unpack_up(up, lacc):
    L = []
    for a in range(3):
        for d in range(4):
            dst = lacc + 8 * a + 2 * d
            L.append(valu(f"v_lshlrev_b32 v{dst}, 16, v{up + 4 * a + d}", [f"v{up + 4 * a + d}"], [f"v{dst}"]))
            L.append(valu(f"v_and_b32 v{dst + 1}, 0xffff0000, v{up + 4 * a + d}", [f"v{up + 4 * a + d}"],
                          [f"v{dst + 1}"]))
    return L


def lateral_post(lacc, up, vlw):
    L = []
    for a in range(3):
        for d in range(4):
            s = lacc + 8 * a + 2 * d
            L.append(valu(f"v_cvt_pk_bf16_f32 v{up + 4 * a + d}, v{s}, v{s + 1}", [f"v{s}", f"v{s + 1}"],
                          [f"v{up + 4 * a + d}"]))
        L.append(ds_write_b128(vlw, up + 4 * a, a * 1600))
    return L


def conv_epilogue(acc, soff):
    L = []
    for d in range(6):
        L.append(valu(f"v_cvt_pk_bf16_f32 v{PK + d}, v{acc + 2 * d}, v{acc + 2 * d + 1}",
                      [f"v{acc + 2 * d}", f"v{acc + 2 * d + 1}"], [f"v{PK + d}"]))
    L.append(buf_store(4, PK, V_OUTA, S_OUT, soff))
    L.append(buf_store(2, PK + 4, V_OUTB, S_OUT, soff))
    return L


class Frag:
    def __init__(self, addr, off, mk):
        self.addr, self.off, self.mk = addr, off, mk


def conv_frags(j, acc):
    fr = []
    n = 0
    for di in range(3):
        for dj in range(3):
            for s in range(3):
                tap = di * 3 + dj
                off = di * ROWB + s * 1600 + (16 * j + dj) * 16
                first = (n == 0)

                def mk(r, tap=tap, s=s, first=first):
                    out = []
                    for T in range(3):
                        f, b = wfrag(tap, s, T)
                        out.append(mfma(acc + 4 * T, b, r, acc + 4 * T, af=f, first=first))
                    return out

                fr.append(Frag(V_BB, off, mk))
                n += 1
    return fr


def lat_frags(groups):
    fr = []
    for s in range(3):
        for tile in range(6):
            def mk(r, s=s, tile=tile):
                return [mfma(l + 4 * tile, r, cf + 4 * s, l + 4 * tile) for (cf, l) in groups]

            fr.append(Frag(V_WL, (tile * 3 + s) * 1024, mk))
    return fr


def stream(blk, segs, ring=RING, nring=NRING, per_gap=2):
    frs = [f for (fs, _) in segs for f in fs]
    D = nring - 1
    issued = 0

    def issue():
        nonlocal issued
        if issued < len(frs):
            f = frs[issued]
            blk.add(ds_read_b128(ring + 4 * (issued % nring), f.addr, f.off))
            issued += 1

    for _ in range(D):
        issue()
    n = 0
    for fs, side in segs:
        side = list(side)
        for f in fs:
            ms = f.mk(ring + 4 * (n % nring))
            for k, m in enumerate(ms):
                blk.add(m)
                budget = per_gap
                if k == 0:
                    issue()
                    budget -= 1
                while budget > 0 and side:
                    blk.add(side.pop(0))
                    budget -= 1
            n += 1
        for x in side:
            blk.add(x)


def dma_chunk(blk, c):
    srd = S_WL if c == 0 else S_WO
    src = 0 if c == 0 else (c - 1) * 18432
    tag = f"dma{c}"
    blk.add(salu(f"s_add_u32 s{S_DSRC}, s{S_W4608}, {src}", [f"s{S_W4608}"], [f"s{S_DSRC}"]))
    blk.add(salu(f"s_add_u32 m0, s{S_W4608}, {BUF[c % 4]}", [f"s{S_W4608}"], ["m0"]))
    for k in range(4):
        blk.add(dma4(V_LN16, srd, S_DSRC, 1024 * k, tag))
    blk.add(salu(f"s_add_u32 s{S_T1}, s{S_DSRC}, 4096", [f"s{S_DSRC}"], [f"s{S_T1}"]))
    blk.add(salu(f"s_add_u32 m0, s{S_W4608}, {BUF[c % 4] + 4096}", [f"s{S_W4608}"], ["m0"]))
    blk.add(salu("s_mov_b32 exec_hi, 0", [], ["exec"]))
    blk.add(dma4(V_LN16, srd, S_T1, 0, tag))
    blk.add(salu("s_mov_b32 exec_hi, -1", [], ["exec"]))


def tr_chunk(blk, c):
    tap = c - 1
    buf = BUF[c % 4]
    ta, tb = TMP, TMP + 1
    blk.add(valu(f"v_add_u32 v{ta}, {buf}, v{V_TA}", [f"v{V_TA}"], [f"v{ta}"]))
    blk.add(valu(f"v_add_u32 v{tb}, {buf}, v{V_TB}", [f"v{V_TB}"], [f"v{tb}"]))
    for s in range(3):
        for T in range(3):
            f, b = wfrag(tap, s, T)
            if T < 2:
                blk.add(ds_read_tr(b, ta, s * 6144 + 8 * T, f))
                blk.add(ds_read_tr(b + 2, ta, s * 6144 + 8 * T + 768, f))
            else:
                blk.add(ds_read_tr(b, tb, s * 6144, f))
                blk.add(ds_read_tr(b + 2, tb, s * 6144 + 768, f))


def build():
    pro = Block("prologue")
    A = pro.add
    A(salu("s_cmp_ge_u32 s2, 0x100", ["s2"], ["scc"]))
    A(I("s_cbranch_scc1 L_end", "branch"))
    A(I("s_load_dwordx4 s[36:39], s[0:1], 0", "smem"))
    A(I("s_load_dwordx4 s[40:43], s[0:1], 16", "smem"))
    A(I("s_load_dwordx2 s[44:45], s[0:1], 32", "smem"))
    lane, q, t0, t1 = TMP, TMP + 1, TMP + 2, TMP + 3
    A(valu(f"v_and_b32 v{lane}, 63, v0", ["v0"], [f"v{lane}"]))
    A(valu(f"v_lshrrev_b32 v{t0}, 6, v0", ["v0"], [f"v{t0}"]))
    A(valu(f"v_and_b32 v{V_L16}, 15, v0", ["v0"], [f"v{V_L16}"]))
    A(valu(f"v_readfirstlane_b32 s{S_W}, v{t0}", [f"v{t0}"], [f"s{S_W}"]))
    A(valu(f"v_lshrrev_b32 v{q}, 4, v{lane}", [f"v{lane}"], [f"v{q}"]))
    A(valu(f"v_lshlrev_b32 v{V_Q16}, 4, v{q}", [f"v{q}"], [f"v{V_Q16}"]))
    A(valu(f"v_lshlrev_b32 v{V_LN16}, 4, v{lane}", [f"v{lane}"], [f"v{V_LN16}"]))
    A(valu(f"v_add_u32 v{V_WL}, {WL_AREA}, v{V_LN16}", [f"v{V_LN16}"], [f"v{V_WL}"]))
    A(valu(f"v_and_b32 v{t0}, 1, v{q}", [f"v{q}"], [f"v{t0}"]))
    A(valu(f"v_mul_u32_u24 v{V_MW}, {HALF}, v{t0}", [f"v{t0}"], [f"v{V_MW}"]))
    A(valu(f"v_lshrrev_b32 v{t0}, 1, v{q}", [f"v{q}"], [f"v{t0}"]))
    A(valu(f"v_mul_u32_u24 v{t0}, 800, v{t0}", [f"v{t0}"], [f"v{t0}"]))
    A(valu(f"v_add_u32 v{V_MW}, v{V_MW}, v{t0}", [f"v{V_MW}", f"v{t0}"], [f"v{V_MW}"]))
    A(salu(f"s_and_b32 s{S_H}, s{S_W}, 1", [f"s{S_W}"], [f"s{S_H}"]))
    A(salu(f"s_lshr_b32 s{S_E}, s{S_W}, 1", [f"s{S_W}"], [f"s{S_E}"]))
    A(salu(f"s_and_b32 s{S_T0}, s2, 7", ["s2"], [f"s{S_T0}"]))
    A(salu(f"s_mul_i32 s{S_X0M}, s{S_T0}, 48", [f"s{S_T0}"], [f"s{S_X0M}"]))
    A(salu(f"s_lshr_b32 s{S_T0}, s2, 3", ["s2"], [f"s{S_T0}"]))
    A(salu(f"s_mul_i32 s{S_Y0M}, s{S_T0}, 12", [f"s{S_T0}"], [f"s{S_Y0M}"]))
    A(salu(f"s_add_u32 s{S_T0}, s{S_Y0M}, s{S_E}", [f"s{S_Y0M}", f"s{S_E}"], [f"s{S_T0}"]))
    A(salu(f"s_mul_i32 s{S_T0}, s{S_T0}, 384", [f"s{S_T0}"], [f"s{S_T0}"]))
    A(salu(f"s_add_u32 s{S_T0}, s{S_T0}, s{S_X0M}", [f"s{S_T0}", f"s{S_X0M}"], [f"s{S_T0}"]))
    A(salu(f"s_mul_i32 s{S_OROW}, s{S_T0}, 192", [f"s{S_T0}"], [f"s{S_OROW}"]))
    A(salu(f"s_sub_u32 s{S_X0M}, s{S_X0M}, 1", [f"s{S_X0M}"], [f"s{S_X0M}"]))
    A(salu(f"s_sub_u32 s{S_Y0M}, s{S_Y0M}, 1", [f"s{S_Y0M}"], [f"s{S_Y0M}"]))
    A(salu(f"s_mul_i32 s{S_W4608}, s{S_W}, 4608", [f"s{S_W}"], [f"s{S_W4608}"]))
    A(salu(f"s_mov_b32 s{S_O1 + 6}, 384", [], [f"s{S_O1 + 6}"]))
    A(salu(f"s_mov_b32 s{S_O1 + 7}, 700", [], [f"s{S_O1 + 7}"]))
    A(salu(f"s_mul_i32 s{S_T0}, s{S_E}, {ROWB}", [f"s{S_E}"], [f"s{S_T0}"]))
    A(valu(f"v_lshl_add_u32 v{V_BB}, v{V_L16}, 4, v{V_MW}", [f"v{V_L16}", f"v{V_MW}"], [f"v{V_BB}"]))
    A(valu(f"v_add_u32 v{V_BB}, s{S_T0}, v{V_BB}", [f"s{S_T0}", f"v{V_BB}"], [f"v{V_BB}"]))
    A(salu(f"s_mul_i32 s{S_T0}, s{S_H}, 96", [f"s{S_H}"], [f"s{S_T0}"]))
    A(valu(f"v_mul_u32_u24 v{t0}, 192, v{V_L16}", [f"v{V_L16}"], [f"v{t0}"]))
    A(valu(f"v_add_u32 v{t0}, s{S_T0}, v{t0}", [f"s{S_T0}", f"v{t0}"], [f"v{t0}"]))
    A(valu(f"v_add_u32 v{V_OUTA}, v{t0}, v{V_Q16}", [f"v{t0}", f"v{V_Q16}"], [f"v{V_OUTA}"]))
    A(valu(f"v_lshl_add_u32 v{V_OUTB}, v{q}, 3, v{t0}", [f"v{q}", f"v{t0}"], [f"v{V_OUTB}"]))
    A(valu(f"v_add_u32 v{V_OUTB}, 64, v{V_OUTB}", [f"v{V_OUTB}"], [f"v{V_OUTB}"]))
    A(valu(f"v_bfe_u32 v{t0}, v{lane}, 2, 2", [f"v{lane}"], [f"v{t0}"]))
    A(valu(f"v_lshl_add_u32 v{t0}, v{q}, 3, v{t0}", [f"v{q}", f"v{t0}"], [f"v{t0}"]))
    A(valu(f"v_mul_u32_u24 v{t0}, 192, v{t0}", [f"v{t0}"], [f"v{t0}"]))
    A(valu(f"v_and_b32 v{t1}, 3, v{lane}", [f"v{lane}"], [f"v{t1}"]))
    A(valu(f"v_lshl_add_u32 v{V_T0}, v{t1}, 4, v{t0}", [f"v{t1}", f"v{t0}"], [f"v{V_T0}"]))
    A(valu(f"v_add_u32 v{V_TA}, s{S_T0}, v{V_T0}", [f"s{S_T0}", f"v{V_T0}"], [f"v{V_TA}"]))
    A(valu(f"v_lshl_add_u32 v{V_TB}, v{t1}, 3, v{t0}", [f"v{t1}", f"v{t0}"], [f"v{V_TB}"]))
    A(valu(f"v_add_u32 v{V_TB}, s{S_T0}, v{V_TB}", [f"s{S_T0}", f"v{V_TB}"], [f"v{V_TB}"]))
    A(valu(f"v_add_u32 v{V_TB}, 64, v{V_TB}", [f"v{V_TB}"], [f"v{V_TB}"]))
    A(I("s_waitcnt lgkmcnt(0)", "other"))
    for srd, lo, size in ((S_CF, 36, 28311552), (S_PC, 38, 7077888), (S_WL, 40, 18432), (S_WO, 42, 165888),
                          (S_OUT, 44, 28311552)):
        A(salu(f"s_mov_b32 s{srd}, s{lo}", [f"s{lo}"], [f"s{srd}"]))
        A(salu(f"s_and_b32 s{srd + 1}, s{lo + 1}, 0xffff", [f"s{lo + 1}"], [f"s{srd + 1}"]))
        A(salu(f"s_mov_b32 s{srd + 2}, {size}", [], [f"s{srd + 2}"]))
        A(salu(f"s_mov_b32 s{srd + 3}, 0x00020000", [], [f"s{srd + 3}"]))
    for c in range(4):
        dma_chunk(pro, c)
    P1 = 24
    A(salu(f"s_mov_b32 s{S_G}, s{S_W}", [f"s{S_W}"], [f"s{S_G}"]))
    pro.extend(lateral_addr(S_G, CFA, UPA, V_LWA, "la"))
    A(salu(f"s_add_u32 s{S_G}, s{S_G}, 4", [f"s{S_G}"], [f"s{S_G}"]))
    pro.extend(lateral_addr(S_G, CFB, UPB, V_LWB, "la"))
    A(salu(f"s_add_u32 s{S_G}, s{S_G}, 4", [f"s{S_G}"], [f"s{S_G}"]))
    pro.extend(lateral_addr(S_G, P1, P1 + 12, V_LWC, "la"))
    A(salu(f"s_add_u32 s{S_G}, s{S_G}, 4", [f"s{S_G}"], [f"s{S_G}"]))
    pro.extend(lateral_addr(S_G, P1 + 24, P1 + 36, V_LWD, "la"))
    A(barrier(waitfor=["dma0"]))
    A(salu(f"s_min_u32 s{S_T0}, s{S_W}, 2", [f"s{S_W}"], [f"s{S_T0}"]))
    A(salu(f"s_mul_i32 s{S_T1}, s{S_T0}, 6144", [f"s{S_T0}"], [f"s{S_T1}"]))
    A(salu(f"s_add_u32 s{S_T1}, s{S_T1}, {BUF[0]}", [f"s{S_T1}"], [f"s{S_T1}"]))
    A(valu(f"v_add_u32 v{TMP}, s{S_T1}, v{V_T0}", [f"s{S_T1}", f"v{V_T0}"], [f"v{TMP}"]))
    A(salu(f"s_lshl_b32 s{S_T1}, s{S_T0}, 10", [f"s{S_T0}"], [f"s{S_T1}"]))
    A(valu(f"v_add_u32 v{TMP + 1}, s{S_T1}, v{V_WL}", [f"s{S_T1}", f"v{V_WL}"], [f"v{TMP + 1}"]))
    WT = WV
    for tile in range(6):
        a, tp = tile // 2, tile % 2
        A(ds_read_tr(WT + 4 * tile, TMP, 64 * a + 8 * tp))
        A(ds_read_tr(WT + 4 * tile + 2, TMP, 64 * a + 8 * tp + 768))
    for tile in range(6):
        A(ds_write_b128(TMP + 1, WT + 4 * tile, tile * 3 * 1024))

    def round_(c):
        A(barrier(waitfor=[f"dma{c}"]))
        if c + 3 <= 9:
            dma_chunk(pro, c + 3)
        tr_chunk(pro, c)

    for c in range(1, 8):
        round_(c)
    pro.extend(unpack_up(UPA, LACC[0]))
    pro.extend(unpack_up(UPB, LACC[1]))
    stream(pro, [(lat_frags([(CFA, LACC[0]), (CFB, LACC[1])]), [])], ring=WV, nring=8)
    pro.extend(lateral_post(LACC[0], UPA, V_LWA))
    pro.extend(lateral_post(LACC[1], UPB, V_LWB))
    pro.extend(unpack_up(P1 + 12, LACC[0]))
    pro.extend(unpack_up(P1 + 36, LACC[1]))
    A(salu(f"s_add_u32 s{S_G}, s{S_G}, 4", [f"s{S_G}"], [f"s{S_G}"]))
    pro.extend(lateral_addr(S_G, CFA, UPA, V_LWA, "la"))
    A(salu(f"s_add_u32 s{S_G}, s{S_G}, 4", [f"s{S_G}"], [f"s{S_G}"]))
    pro.extend(lateral_addr(S_G, CFB, UPB, V_LWB, "la"))
    stream(pro, [(lat_frags([(P1, LACC[0]), (P1 + 24, LACC[1])]), [])], ring=WV, nring=8)
    pro.extend(lateral_post(LACC[0], P1 + 12, V_LWC))
    pro.extend(lateral_post(LACC[1], P1 + 36, V_LWD))
    for c in range(8, 10):
        round_(c)
    A(salu(f"s_mov_b32 s{S_CNT}, 0", [], [f"s{S_CNT}"]))
    A(barrier())

    def step_body(name, lat):
        b = Block(name)
        b.add(label(f"L_{name}"))
        b.add(salu(f"s_add_u32 s{S_O1}, s{S_OROW}, 3072", [f"s{S_OROW}"], [f"s{S_O1}"]))
        b.add(salu(f"s_add_u32 s{S_O2}, s{S_OROW}, 6144", [f"s{S_OROW}"], [f"s{S_O2}"]))
        segs = []
        if lat:
            nxt = [salu(f"s_add_u32 s{S_G}, s{S_G}, 4", [f"s{S_G}"], [f"s{S_G}"])] + \
                  lateral_addr(S_G, CFA, UPA, V_LWA, "la") + \
                  [salu(f"s_add_u32 s{S_G}, s{S_G}, 4", [f"s{S_G}"], [f"s{S_G}"])] + \
                  lateral_addr(S_G, CFB, UPB, V_LWB, "la")
            segs.append((conv_frags(0, ACC[0]), unpack_up(UPA, LACC[0]) + unpack_up(UPB, LACC[1])))
            segs.append((lat_frags([(CFA, LACC[0]), (CFB, LACC[1])]), conv_epilogue(ACC[0], S_OROW)))
            segs.append((conv_frags(1, ACC[1]),
                         lateral_post(LACC[0], UPA, V_LWA) + lateral_post(LACC[1], UPB, V_LWB) + nxt))
            segs.append((conv_frags(2, ACC[0]), conv_epilogue(ACC[1], S_O1)))
        else:
            segs.append((conv_frags(0, ACC[0]), []))
            segs.append((conv_frags(1, ACC[1]), conv_epilogue(ACC[0], S_OROW)))
            segs.append((conv_frags(2, ACC[0]), conv_epilogue(ACC[1], S_O1)))
        stream(b, segs)
        b.extend(conv_epilogue(ACC[0], S_O2))
        b.add(salu(f"s_add_u32 s{S_OROW}, s{S_OROW}, {2 * 384 * 192}", [f"s{S_OROW}"], [f"s{S_OROW}"]))
        b.add(valu(f"v_add_u32 v{V_BB}, {2 * ROWB}, v{V_BB}", [f"v{V_BB}"], [f"v{V_BB}"]))
        b.add(salu(f"s_add_u32 s{S_CNT}, s{S_CNT}, 1", [f"s{S_CNT}"], [f"s{S_CNT}"]))
        b.add(barrier())
        return b

    la = step_body("loopA", True)
    la.add(salu(f"s_cmp_lt_u32 s{S_CNT}, 4", [f"s{S_CNT}"], ["scc"]))
    la.add(I("s_cbranch_scc1 L_loopA", "branch"))
    lb = step_body("loopB", False)
    lb.add(salu(f"s_cmp_lt_u32 s{S_CNT}, 6", [f"s{S_CNT}"], ["scc"]))
    lb.add(I("s_cbranch_scc1 L_loopB", "branch"))
    tail = Block("tail")
    tail.add(label("L_end"))
    tail.add(I("s_endpgm", "other"))
    trace = pro.ins + la.ins * 4 + lb.ins * 2 + tail.ins
    simulate(trace)
    return render([pro, la, lb, tail])


HDR = open("standalone__detection_seg_fpn_lateral__vision.s.ref").read().split("; Override")[0]


def main():
    body = build()
    txt = HDR + f"""; @launch grid=(256,1,1) block=(256,1,1) lds={LDS_BYTES}
.amdgcn_target "amdgcn-amd-amdhsa--gfx950"
.text
.globl {NAME}
.p2align 8
.type {NAME},@function
{NAME}:
{body}
.section .rodata,"a"
.p2align 6
.amdhsa_kernel {NAME}
  .amdhsa_next_free_vgpr 512
  .amdhsa_next_free_sgpr 102
  .amdhsa_accum_offset 256
  .amdhsa_group_segment_fixed_size 0
  .amdhsa_kernarg_size 56
  .amdhsa_user_sgpr_count 2
  .amdhsa_user_sgpr_kernarg_segment_ptr 1
  .amdhsa_system_sgpr_workgroup_id_x 1
.end_amdhsa_kernel
"""
    out = sys.argv[1] if len(sys.argv) > 1 else "standalone__detection_seg_fpn_lateral__vision.s"
    open(out, "w").write(txt)


main()
```

```python
import re


def vr(base, n=1, f="v"):
    return [f"{f}{base + i}" for i in range(n)]


def rng(base, n=1, f="v"):
    if n == 1:
        return f"{f}{base}"
    return f"{f}[{base}:{base + n - 1}]"


class I:
    __slots__ = ("text", "kind", "rd", "wr", "tag", "waitfor", "need_vm", "need_lgkm", "nops", "srcc",
                 "force_vm", "force_lgkm", "label", "wide_store")

    def __init__(self, text, kind, rd=(), wr=(), tag=None, srcc=(), wide_store=False):
        self.text = text
        self.kind = kind
        self.rd = tuple(rd)
        self.wr = tuple(wr)
        self.tag = tag
        self.waitfor = None
        self.need_vm = None
        self.need_lgkm = None
        self.nops = 0
        self.srcc = tuple(srcc)
        self.force_vm = None
        self.force_lgkm = None
        self.wide_store = wide_store


class Block:
    def __init__(self, name):
        self.name = name
        self.ins = []

    def add(self, i):
        if isinstance(i, (list, tuple)):
            for x in i:
                self.add(x)
            return i
        self.ins.append(i)
        return i

    def extend(self, l):
        for i in l:
            self.add(i)


def simulate(trace):
    lds_q = []
    vm_q = []
    hist = []
    for ins in trace:
        if ins.kind == "label":
            continue
        touched = set(ins.rd) | {r for r in ins.wr if not r.startswith("lds")}
        nl = None
        for k, d in enumerate(lds_q):
            if d & touched:
                n = len(lds_q) - 1 - k
                nl = n if nl is None else min(nl, n)
        nv = None
        for k, (d, tg) in enumerate(vm_q):
            hit = bool(d & touched)
            if ins.waitfor and tg in ins.waitfor:
                hit = True
            if hit:
                n = len(vm_q) - 1 - k
                nv = n if nv is None else min(nv, n)
        if ins.force_lgkm is not None:
            nl = ins.force_lgkm if nl is None else min(nl, ins.force_lgkm)
        if ins.force_vm is not None:
            nv = ins.force_vm if nv is None else min(nv, ins.force_vm)
        if nl is not None:
            if nl < len(lds_q):
                lds_q = lds_q[len(lds_q) - nl:] if nl > 0 else []
            ins.need_lgkm = nl if ins.need_lgkm is None else min(ins.need_lgkm, nl)
        if nv is not None:
            if nv < len(vm_q):
                vm_q = vm_q[len(vm_q) - nv:] if nv > 0 else []
            ins.need_vm = nv if ins.need_vm is None else min(ins.need_vm, nv)
        need = 0
        dist = 0
        for p in reversed(hist):
            req = 0
            pw = set(p.wr)
            if p.kind == "valu":
                if ins.kind == "mfma" and pw & set(ins.rd):
                    req = max(req, 2)
                sw = {r for r in pw if r[0] == "s" or r == "vcc"}
                if sw & set(ins.rd):
                    if ins.kind == "valu":
                        req = max(req, 2)
                    if ins.kind in ("vld", "vst", "dma"):
                        req = max(req, 5)
                if "readfirstlane" in ins.text and pw & set(ins.rd):
                    req = max(req, 1)
            if p.kind == "mfma":
                if ins.kind != "mfma" and pw & touched:
                    req = max(req, 8)
                if ins.kind == "mfma":
                    ab = set(ins.rd) - set(ins.srcc)
                    if pw & ab:
                        req = max(req, 8)
                    if pw & set(ins.srcc) and set(ins.srcc) != pw:
                        req = max(req, 6)
                if ins.kind == "valu" and set(p.srcc) & set(ins.wr):
                    req = max(req, 3)
            if p.kind == "salu" and "m0" in pw and ins.kind == "dma":
                req = max(req, 1)
            if p.wide_store and set(p.rd) & set(ins.wr):
                req = max(req, 2)
            if req > dist:
                need = max(need, req - dist)
            dist += 1 + 0
            if dist > 10:
                break
        ins.nops = max(ins.nops, need)
        for _ in range(ins.nops):
            hist.append(I("s_nop", "other"))
        if ins.text:
            hist.append(ins)
        if len(hist) > 24:
            hist = hist[-24:]
        if ins.kind in ("dsr", "dsw"):
            lds_q.append(set(ins.wr))
        elif ins.kind in ("vld", "vst", "dma"):
            vm_q.append((set(ins.wr), ins.tag))
        assert len(vm_q) < 63, "vmcnt overflow"
        assert len(lds_q) <= 15 + 100


def render(blocks):
    out = []
    for b in blocks:
        out.append(f"; ---- {b.name}")
        for ins in b.ins:
            if ins.kind == "label":
                out.append(ins.text)
                continue
            w = []
            if ins.need_vm is not None:
                w.append(f"vmcnt({min(ins.need_vm, 63)})")
            if ins.need_lgkm is not None:
                w.append(f"lgkmcnt({min(ins.need_lgkm, 15)})")
            if w:
                out.append("    s_waitcnt " + " ".join(w))
            n = ins.nops
            while n > 0:
                k = min(n, 16)
                out.append(f"    s_nop {k - 1}")
                n -= k
            if ins.text:
                out.append("    " + ins.text)
    return "\n".join(out)


def valu(text, rd, wr):
    return I(text, "valu", rd, wr)


def salu(text, rd=(), wr=()):
    return I(text, "salu", rd, wr)


def label(name):
    return I(name + ":", "label")


def mfma(d, a, b, c, af="v", first=False):
    ctext = "0" if first else rng(c, 4)
    t = f"v_mfma_f32_16x16x32_bf16 {rng(d, 4)}, {rng(a, 4, af)}, {rng(b, 4)}, {ctext}"
    rd = vr(a, 4, af) + vr(b, 4) + ([] if first else vr(c, 4))
    return I(t, "mfma", rd, vr(d, 4), srcc=([] if first else vr(c, 4)))


def ds_read_b128(d, addr, off, f="v"):
    return I(f"ds_read_b128 {rng(d, 4, f)}, v{addr} offset:{off}", "dsr", [f"v{addr}"], vr(d, 4, f))


def ds_read_tr(d, addr, off, f="v"):
    return I(f"ds_read_b64_tr_b16 {rng(d, 2, f)}, v{addr} offset:{off}", "dsr", [f"v{addr}"], vr(d, 2, f))


def ds_write_b128(addr, s, off):
    return I(f"ds_write_b128 v{addr}, {rng(s, 4)} offset:{off}", "dsw", [f"v{addr}"] + vr(s, 4), [])


def buf_load4(d, voff, srd, soff, off, tag=None):
    so = f"s{soff}" if isinstance(soff, int) else soff
    rd = [f"v{voff}"] + vr(srd, 4, "s") + ([f"s{soff}"] if isinstance(soff, int) else [])
    o = f" offset:{off}" if off else ""
    return I(f"buffer_load_dwordx4 {rng(d, 4)}, v{voff}, {rng(srd, 4, 's')}, {so} offen{o}", "vld", rd, vr(d, 4), tag)


def buf_store(n, s, voff, srd, soff, off=0):
    so = f"s{soff}" if isinstance(soff, int) else soff
    rd = [f"v{voff}"] + vr(s, n) + vr(srd, 4, "s") + ([f"s{soff}"] if isinstance(soff, int) else [])
    o = f" offset:{off}" if off else ""
    nm = {1: "dword", 2: "dwordx2", 3: "dwordx3", 4: "dwordx4"}[n]
    import os
    o += (" " + os.environ["STFLAG"]) if os.environ.get("STFLAG") else ""
    return I(f"buffer_store_{nm} {rng(s, n)}, v{voff}, {rng(srd, 4, 's')}, {so} offen{o}", "vst", rd, [],
             wide_store=(n >= 3))


def dma4(voff, srd, soff, off, tag):
    rd = [f"v{voff}", "m0", f"s{soff}"] + vr(srd, 4, "s")
    o = f" offset:{off}" if off else ""
    return I(f"buffer_load_dwordx4 v{voff}, {rng(srd, 4, 's')}, s{soff} offen{o} lds", "dma", rd, [], tag)


def barrier(lgkm0=True, waitfor=None):
    i = I("s_barrier", "bar")
    if lgkm0:
        i.force_lgkm = 0
    i.waitfor = waitfor
    return i


def waitfor(tags=None, lgkm=None, vm=None):
    i = I("", "other")
    i.waitfor = tags
    i.force_lgkm = lgkm
    i.force_vm = vm
    return i
```

```python
import sys
from asmlib import *

NAME = "standalone__detection_seg_fpn_lateral__vision_kernel"
STAMPS = "--stamps" in sys.argv

ROWB = 4800
HALF = 67328
WL_AREA = 2 * HALF
DUMMY = WL_AREA + 18432
LDS_BYTES = 163840
BUF = [6 * ROWB, 6 * ROWB + 18432, HALF + 6 * ROWB, HALF + 6 * ROWB + 18432]

V_BB = 1
V_WL = 2
V_OUTA = 3
V_OUTB = 4
V_OC = [5, 6]
V_OU = [7, 8]
V_LW = [9, 10]
V_LI = [11, 12]
V_LN16 = 13
V_TA = 14
V_TB = 15
RING = 16
NRING = 8
ACC = [48, 60, 72]
LACC = [84, 108]
CF = [132, 156]
UP = [144, 168]
WV = 180
PK = 248
TMP = 84
TT = 254

S_CF, S_PC, S_WL, S_WO, S_OUT = 4, 8, 12, 16, 20
S_W, S_H, S_E, S_X0M, S_Y0M, S_OROW, S_G, S_CNT = 24, 25, 26, 27, 28, 29, 30, 31
S_W4608, S_T0, S_T1, S_DSRC, S_O1, S_O2, S_OPREV = 33, 34, 35, 46, 47, 52, 55
S_H96 = 56


def V(x):
    return f"v{x}"


def S(x):
    return f"s{x}"


def wfrag(tap, s, T):
    f = (tap * 3 + s) * 3 + T
    if f < 64:
        return ("a", 4 * f)
    return ("v", WV + 4 * (f - 64))


_nst = [0]


def stamp(blk, dyn=False):
    if not STAMPS:
        return
    blk.add(I("s_memtime s[98:99]", "other"))
    blk.add(I("s_waitcnt lgkmcnt(0)", "other"))
    if dyn:
        for k in range(1, 7):
            blk.add(I(f"s_cmp_eq_u32 s{S_CNT}, {k}", "other"))
            blk.add(I(f"s_cselect_b32 s{78 + k}, s98, s{78 + k}", "other"))
    else:
        k = _nst[0]
        _nst[0] += 1
        blk.add(I(f"s_mov_b32 s{70 + k}, s98", "other"))


def lat_loads(k, cf, up):
    L = []
    for s in range(3):
        L.append(buf_load4(cf + 4 * s, V_OC[k], S_CF, "0", 64 * s))
    for a in range(3):
        L.append(buf_load4(up + 4 * a, V_OU[k], S_PC, "0", 64 * a))
    return L


def lat_advance_global(k):
    return [valu(f"v_add_u32 v{V_OC[k]}, 0x24000, v{V_OC[k]}", [V(V_OC[k])], [V(V_OC[k])]),
            valu(f"v_add_u32 v{V_OU[k]}, 0x9000, v{V_OU[k]}", [V(V_OU[k])], [V(V_OU[k])])]


def lat_advance_lds(k):
    return [valu(f"v_add_u32 v{V_LW[k]}, v{V_LW[k]}, v{V_LI[k]}", [V(V_LW[k]), V(V_LI[k])], [V(V_LW[k])])]


def unpack_up(up, lacc):
    L = []
    for a in range(3):
        for d in range(4):
            dst = lacc + 8 * a + 2 * d
            L.append(valu(f"v_lshlrev_b32 v{dst}, 16, v{up + 4 * a + d}", [V(up + 4 * a + d)], [V(dst)]))
            L.append(valu(f"v_and_b32 v{dst + 1}, 0xffff0000, v{up + 4 * a + d}", [V(up + 4 * a + d)], [V(dst + 1)]))
    return L


def lateral_post(lacc, up, vlw):
    L = []
    for a in range(3):
        for d in range(4):
            s = lacc + 8 * a + 2 * d
            L.append(valu(f"v_cvt_pk_bf16_f32 v{lacc + 8 * a + d}, v{s}, v{s + 1}", [V(s), V(s + 1)],
                          [V(lacc + 8 * a + d)]))
        w = ds_write_b128(vlw, lacc + 8 * a, a * 1600)
        w.wr = ("ldsw",)
        L.append(w)
    return L


def conv_epilogue(acc, soff):
    L = []
    for d in range(6):
        L.append(valu(f"v_cvt_pk_bf16_f32 v{PK + d}, v{acc + 2 * d}, v{acc + 2 * d + 1}",
                      [V(acc + 2 * d), V(acc + 2 * d + 1)], [V(PK + d)]))
    L.append(buf_store(4, PK, V_OUTA, S_OUT, soff))
    L.append(buf_store(2, PK + 4, V_OUTB, S_OUT, soff))
    return L


class Frag:
    def __init__(self, addr, off, mk):
        self.addr, self.off, self.mk = addr, off, mk


def conv_frag(j, di, dj, s, acc, first, extra=0):
    tap = di * 3 + dj
    off = di * ROWB + s * 1600 + (16 * j + dj) * 16 + extra

    def mk(r):
        out = []
        for T in range(3):
            f, b = wfrag(tap, s, T)
            out.append(mfma(acc + 4 * T, b, r, acc + 4 * T, af=f, first=first))
        return out

    return Frag(V_BB, off, mk)


def conv_frags(j, acc, extra=0):
    fr = []
    for di in range(3):
        for dj in range(3):
            for s in range(3):
                fr.append(conv_frag(j, di, dj, s, acc, len(fr) == 0, extra))
    return fr


def lat_frags(groups):
    fr = []
    for s in range(3):
        for tile in range(6):
            def mk(r, s=s, tile=tile):
                return [mfma(l + 4 * tile, r, cf + 4 * s, l + 4 * tile) for (cf, l) in groups]

            fr.append(Frag(V_WL, (tile * 3 + s) * 1024, mk))
    return fr


def stream(blk, frs, sides, ring=RING, nring=NRING, preloaded=0, nextfr=()):
    allf = list(frs) + list(nextfr)
    D = nring - 1
    issued = preloaded

    def issue():
        nonlocal issued
        if issued < len(allf):
            f = allf[issued]
            blk.add(ds_read_b128(ring + 4 * (issued % nring), f.addr, f.off))
            issued += 1

    while issued < D:
        issue()
    nm = sum(len(f.mk(ring)) for f in frs)
    slots = [[] for _ in range(nm + 1)]
    for ins, lo, hi in sides:
        n = len(ins)
        hi = min(hi, nm - 1)
        for k, x in enumerate(ins):
            pos = lo + ((hi - lo + 1) * k) // n if n else lo
            slots[min(pos, nm)].append(x)
    mi = 0
    for n, f in enumerate(frs):
        ms = f.mk(ring + 4 * (n % nring))
        for k, m in enumerate(ms):
            blk.add(m)
            if k == 0:
                issue()
            for x in slots[mi]:
                blk.add(x)
            mi += 1
    for x in slots[nm]:
        blk.add(x)
    assert len(frs) % nring == 0 or not nextfr, "ring phase must realign when prefetching the next stream"


def dma_chunk(c):
    srd = S_WL if c == 0 else S_WO
    src = 0 if c == 0 else (c - 1) * 18432
    tag = f"dma{c}"
    L = []
    L.append(salu(f"s_add_u32 s{S_DSRC}, s{S_W4608}, {src}", [S(S_W4608)], [S(S_DSRC)]))
    L.append(salu(f"s_add_u32 m0, s{S_W4608}, {BUF[c % 4]}", [S(S_W4608)], ["m0"]))
    for k in range(4):
        L.append(dma4(V_LN16, srd, S_DSRC, 1024 * k, tag))
    L.append(salu(f"s_add_u32 s{S_T1}, s{S_DSRC}, 4096", [S(S_DSRC)], [S(S_T1)]))
    L.append(salu(f"s_add_u32 m0, s{S_W4608}, {BUF[c % 4] + 4096}", [S(S_W4608)], ["m0"]))
    L.append([salu("s_mov_b32 exec_hi, 0", [], ["exec"]),
              dma4(V_LN16, srd, S_T1, 0, tag),
              salu("s_mov_b32 exec_hi, -1", [], ["exec"])])
    return L


def tap_regs(tap):
    r = []
    for s in range(3):
        for T in range(3):
            f, b = wfrag(tap, s, T)
            r += vr(b, 4, f)
    return r


def tr_chunk(c):
    tap = c - 1
    buf = BUF[c % 4]
    ta, tb = TT, TT + 1
    L = []
    L.append(valu(f"v_add_u32 v{ta}, {buf}, v{V_TA}", [V(V_TA)], [V(ta)]))
    L.append(valu(f"v_add_u32 v{tb}, {buf}, v{V_TB}", [V(V_TB)], [V(tb)]))
    for s in range(3):
        for T in range(3):
            f, b = wfrag(tap, s, T)
            if T < 2:
                L.append(ds_read_tr(b, ta, s * 6144 + 8 * T, f))
                L.append(ds_read_tr(b + 2, ta, s * 6144 + 8 * T + 768, f))
            else:
                L.append(ds_read_tr(b, tb, s * 6144, f))
                L.append(ds_read_tr(b + 2, tb, s * 6144 + 768, f))
    return L


def round_(c, prev_regs, dma=None):
    b = barrier(lgkm0=False, waitfor=[f"dma{c}"])
    b.rd = tuple(prev_regs)
    tr = tr_chunk(c)
    if dma is None or dma > 9:
        return [b] + tr
    d = dma_chunk(dma)
    out = [b]
    while tr or d:
        out += tr[:2]
        tr = tr[2:]
        out += d[:1]
        d = d[1:]
    return out


def weave(main, side, every):
    out = []
    side = list(side)
    for k, x in enumerate(main):
        out.append(x)
        if k % every == every - 1 and side:
            out.append(side.pop(0))
    return out + side


def build():
    pro = Block("prologue")
    A = pro.add
    A(salu("s_cmp_ge_u32 s2, 0x100", ["s2"], ["scc"]))
    A(I("s_cbranch_scc1 L_end", "branch"))
    stamp(pro)
    A(I("s_load_dwordx4 s[36:39], s[0:1], 0", "smem"))
    A(I("s_load_dwordx4 s[40:43], s[0:1], 16", "smem"))
    A(I("s_load_dwordx2 s[44:45], s[0:1], 32", "smem"))
    lane, q, t0, t1, l16, q16, mw, idx, dr, kap, y, x, t2 = [TMP + i for i in range(13)]
    A(valu(f"v_and_b32 v{lane}, 63, v0", ["v0"], [V(lane)]))
    A(valu(f"v_lshrrev_b32 v{t0}, 6, v0", ["v0"], [V(t0)]))
    A(valu(f"v_and_b32 v{l16}, 15, v0", ["v0"], [V(l16)]))
    A(valu(f"v_readfirstlane_b32 s{S_W}, v{t0}", [V(t0)], [S(S_W)]))
    A(valu(f"v_lshrrev_b32 v{q}, 4, v{lane}", [V(lane)], [V(q)]))
    A(valu(f"v_lshlrev_b32 v{q16}, 4, v{q}", [V(q)], [V(q16)]))
    A(valu(f"v_lshlrev_b32 v{V_LN16}, 4, v{lane}", [V(lane)], [V(V_LN16)]))
    A(valu(f"v_add_u32 v{V_WL}, {WL_AREA}, v{V_LN16}", [V(V_LN16)], [V(V_WL)]))
    A(valu(f"v_and_b32 v{t0}, 1, v{q}", [V(q)], [V(t0)]))
    A(valu(f"v_mul_u32_u24 v{mw}, {HALF}, v{t0}", [V(t0)], [V(mw)]))
    A(valu(f"v_lshrrev_b32 v{t0}, 1, v{q}", [V(q)], [V(t0)]))
    A(valu(f"v_mul_u32_u24 v{t0}, 800, v{t0}", [V(t0)], [V(t0)]))
    A(valu(f"v_add_u32 v{mw}, v{mw}, v{t0}", [V(mw), V(t0)], [V(mw)]))
    A(salu(f"s_and_b32 s{S_H}, s{S_W}, 1", [S(S_W)], [S(S_H)]))
    A(salu(f"s_lshr_b32 s{S_E}, s{S_W}, 1", [S(S_W)], [S(S_E)]))
    A(salu(f"s_and_b32 s{S_T0}, s2, 7", ["s2"], [S(S_T0)]))
    A(salu(f"s_mul_i32 s{S_X0M}, s{S_T0}, 48", [S(S_T0)], [S(S_X0M)]))
    A(salu(f"s_lshr_b32 s{S_T0}, s2, 3", ["s2"], [S(S_T0)]))
    A(salu(f"s_mul_i32 s{S_Y0M}, s{S_T0}, 12", [S(S_T0)], [S(S_Y0M)]))
    A(salu(f"s_add_u32 s{S_T0}, s{S_Y0M}, s{S_E}", [S(S_Y0M), S(S_E)], [S(S_T0)]))
    A(salu(f"s_mul_i32 s{S_T0}, s{S_T0}, 384", [S(S_T0)], [S(S_T0)]))
    A(salu(f"s_add_u32 s{S_T0}, s{S_T0}, s{S_X0M}", [S(S_T0), S(S_X0M)], [S(S_T0)]))
    A(salu(f"s_mul_i32 s{S_OROW}, s{S_T0}, 192", [S(S_T0)], [S(S_OROW)]))
    A(salu(f"s_sub_u32 s{S_X0M}, s{S_X0M}, 1", [S(S_X0M)], [S(S_X0M)]))
    A(salu(f"s_sub_u32 s{S_Y0M}, s{S_Y0M}, 1", [S(S_Y0M)], [S(S_Y0M)]))
    A(salu(f"s_mul_i32 s{S_W4608}, s{S_W}, 4608", [S(S_W)], [S(S_W4608)]))
    A(salu(f"s_mul_i32 s{S_H96}, s{S_H}, 96", [S(S_H)], [S(S_H96)]))
    A(salu(f"s_mov_b32 s53, 384", [], ["s53"]))
    A(salu(f"s_mov_b32 s54, 100", [], ["s54"]))
    for k in range(2):
        A(salu(f"s_lshl_b32 s{S_T0}, s{S_W}, 4", [S(S_W)], [S(S_T0)]))
        if k:
            A(salu(f"s_add_u32 s{S_T0}, s{S_T0}, 64", [S(S_T0)], [S(S_T0)]))
        A(valu(f"v_add_u32 v{idx}, s{S_T0}, v{l16}", [S(S_T0), V(l16)], [V(idx)]))
        A(valu(f"v_cmp_lt_u32 vcc, 49, v{idx}", [V(idx)], ["vcc"]))
        A(valu(f"v_cmp_gt_u32 s[50:51], s54, v{idx}", [V(idx), "s54"], ["s50", "s51"]))
        A(valu(f"v_cndmask_b32 v{dr}, 0, 1, vcc", ["vcc"], [V(dr)]))
        A(valu(f"v_mul_u32_u24 v{t0}, 50, v{dr}", [V(dr)], [V(t0)]))
        A(valu(f"v_sub_u32 v{kap}, v{idx}, v{t0}", [V(idx), V(t0)], [V(kap)]))
        A(valu(f"v_add_u32 v{y}, s{S_Y0M}, v{dr}", [S(S_Y0M), V(dr)], [V(y)]))
        A(valu(f"v_add_u32 v{x}, s{S_X0M}, v{kap}", [S(S_X0M), V(kap)], [V(x)]))
        A(valu(f"v_cmp_gt_u32 s[48:49], s53, v{x}", [V(x), "s53"], ["s48", "s49"]))
        A(valu(f"v_mad_i32_i24 v{t0}, v{y}, s53, v{x}", [V(y), "s53", V(x)], [V(t0)]))
        A(valu(f"v_mul_i32_i24 v{t0}, 0xc0, v{t0}", [V(t0)], [V(t0)]))
        A(valu(f"v_add_u32 v{t0}, v{t0}, v{q16}", [V(t0), V(q16)], [V(t0)]))
        A(salu("s_and_b64 vcc, s[48:49], s[50:51]", ["s48", "s49", "s50", "s51"], ["vcc"]))
        A(valu(f"v_ashrrev_i32 v{y}, 1, v{y}", [V(y)], [V(y)]))
        A(valu(f"v_ashrrev_i32 v{x}, 1, v{x}", [V(x)], [V(x)]))
        A(valu(f"v_mul_i32_i24 v{t1}, 0xc0, v{y}", [V(y)], [V(t1)]))
        A(valu(f"v_add_u32 v{t1}, v{t1}, v{x}", [V(t1), V(x)], [V(t1)]))
        A(valu(f"v_mul_i32_i24 v{t1}, 0xc0, v{t1}", [V(t1)], [V(t1)]))
        A(valu(f"v_add_u32 v{t1}, v{t1}, v{q16}", [V(t1), V(q16)], [V(t1)]))
        A(valu(f"v_mov_b32 v{t2}, 0x80000000", [], [V(t2)]))
        A(valu(f"v_cndmask_b32 v{V_OC[k]}, v{t2}, v{t0}, vcc", [V(t2), V(t0), "vcc"], [V(V_OC[k])]))
        A(valu(f"v_cndmask_b32 v{V_OU[k]}, v{t2}, v{t1}, vcc", [V(t2), V(t1), "vcc"], [V(V_OU[k])]))
        A(valu(f"v_mul_u32_u24 v{t0}, {ROWB}, v{dr}", [V(dr)], [V(t0)]))
        A(valu(f"v_lshl_add_u32 v{t0}, v{kap}, 4, v{t0}", [V(kap), V(t0)], [V(t0)]))
        A(valu(f"v_add_u32 v{t0}, v{t0}, v{mw}", [V(t0), V(mw)], [V(t0)]))
        A(valu(f"v_mov_b32 v{t2}, {DUMMY}", [], [V(t2)]))
        A(valu(f"v_cndmask_b32 v{V_LW[k]}, v{t2}, v{t0}, s[50:51]", [V(t2), V(t0), "s50", "s51"], [V(V_LW[k])]))
        A(valu(f"v_mov_b32 v{t2}, {2 * ROWB}", [], [V(t2)]))
        A(valu(f"v_cndmask_b32 v{V_LI[k]}, 0, v{t2}, s[50:51]", [V(t2), "s50", "s51"], [V(V_LI[k])]))
    if "--fine" in sys.argv:
        stamp(pro)
    A(I("s_waitcnt lgkmcnt(0)", "other"))
    if "--fine" in sys.argv:
        stamp(pro)

    def srd(srd_, lo, size):
        A(salu(f"s_mov_b32 s{srd_}, s{lo}", [S(lo)], [S(srd_)]))
        A(salu(f"s_and_b32 s{srd_ + 1}, s{lo + 1}, 0xffff", [S(lo + 1)], [S(srd_ + 1)]))
        A(salu(f"s_mov_b32 s{srd_ + 2}, {size}", [], [S(srd_ + 2)]))
        A(salu(f"s_mov_b32 s{srd_ + 3}, 0x00020000", [], [S(srd_ + 3)]))

    srd(S_WL, 40, 18432)
    pro.extend(dma_chunk(0))
    srd(S_CF, 36, 28311552)
    srd(S_PC, 38, 7077888)
    P1 = WV
    for k in range(2):
        pro.extend(lat_loads(k, CF[k], UP[k]))
        pro.extend(lat_advance_global(k))
    srd(S_WO, 42, 165888)
    pro.extend(dma_chunk(1))
    A(salu(f"s_lshr_b32 s{S_T0}, s2, 3", ["s2"], [S(S_T0)]))
    A(salu(f"s_and_b32 s{S_T0}, s{S_T0}, 7", [S(S_T0)], [S(S_T0)]))
    A(salu(f"s_lshl_b32 s{S_T0}, s{S_T0}, 2", [S(S_T0)], [S(S_T0)]))
    A(salu(f"s_add_u32 s{S_T0}, s{S_T0}, s{S_W}", [S(S_T0), S(S_W)], [S(S_T0)]))
    A(salu(f"s_mul_i32 s{S_T0}, s{S_T0}, 5248", [S(S_T0)], [S(S_T0)]))
    A(valu(f"v_lshlrev_b32 v{t0}, 7, v{lane}", [V(lane)], [V(t0)]))
    A(I(f"buffer_load_dword v{PK}, v{t0}, s[{S_WO}:{S_WO + 3}], s{S_T0} offen", "vld", [V(t0), S(S_T0)], [V(PK)]))
    if "--fine" in sys.argv:
        stamp(pro)
    srd(S_OUT, 44, 28311552)
    A(salu(f"s_mul_i32 s{S_T0}, s{S_E}, {ROWB}", [S(S_E)], [S(S_T0)]))
    A(valu(f"v_lshl_add_u32 v{V_BB}, v{l16}, 4, v{mw}", [V(l16), V(mw)], [V(V_BB)]))
    A(valu(f"v_add_u32 v{V_BB}, s{S_T0}, v{V_BB}", [S(S_T0), V(V_BB)], [V(V_BB)]))
    A(valu(f"v_mul_u32_u24 v{t0}, 192, v{l16}", [V(l16)], [V(t0)]))
    A(valu(f"v_add_u32 v{t0}, s{S_H96}, v{t0}", [S(S_H96), V(t0)], [V(t0)]))
    A(valu(f"v_add_u32 v{V_OUTA}, v{t0}, v{q16}", [V(t0), V(q16)], [V(V_OUTA)]))
    A(valu(f"v_lshl_add_u32 v{V_OUTB}, v{q}, 3, v{t0}", [V(q), V(t0)], [V(V_OUTB)]))
    A(valu(f"v_add_u32 v{V_OUTB}, 64, v{V_OUTB}", [V(V_OUTB)], [V(V_OUTB)]))
    A(valu(f"v_bfe_u32 v{t0}, v{lane}, 2, 2", [V(lane)], [V(t0)]))
    A(valu(f"v_lshl_add_u32 v{t0}, v{q}, 3, v{t0}", [V(q), V(t0)], [V(t0)]))
    A(valu(f"v_mul_u32_u24 v{t0}, 192, v{t0}", [V(t0)], [V(t0)]))
    A(valu(f"v_and_b32 v{t1}, 3, v{lane}", [V(lane)], [V(t1)]))
    A(valu(f"v_lshl_add_u32 v{t2}, v{t1}, 4, v{t0}", [V(t1), V(t0)], [V(t2)]))
    A(valu(f"v_add_u32 v{V_TA}, s{S_H96}, v{t2}", [S(S_H96), V(t2)], [V(V_TA)]))
    A(valu(f"v_lshl_add_u32 v{V_TB}, v{t1}, 3, v{t0}", [V(t1), V(t0)], [V(V_TB)]))
    A(valu(f"v_add_u32 v{V_TB}, s{S_H96}, v{V_TB}", [S(S_H96), V(V_TB)], [V(V_TB)]))
    A(valu(f"v_add_u32 v{V_TB}, 64, v{V_TB}", [V(V_TB)], [V(V_TB)]))
    A(salu(f"s_min_u32 s{S_T0}, s{S_W}, 2", [S(S_W)], [S(S_T0)]))
    A(salu(f"s_mul_i32 s{S_T1}, s{S_T0}, 6144", [S(S_T0)], [S(S_T1)]))
    A(salu(f"s_add_u32 s{S_T1}, s{S_T1}, {BUF[0]}", [S(S_T1)], [S(S_T1)]))
    A(valu(f"v_add_u32 v{TT}, s{S_T1}, v{t2}", [S(S_T1), V(t2)], [V(TT)]))
    A(salu(f"s_lshl_b32 s{S_T1}, s{S_T0}, 10", [S(S_T0)], [S(S_T1)]))
    A(valu(f"v_add_u32 v{TT + 1}, s{S_T1}, v{V_WL}", [S(S_T1), V(V_WL)], [V(TT + 1)]))
    stamp(pro)
    A(barrier(lgkm0=False, waitfor=["dma0"]))
    WT = RING
    wl = []
    for tile in range(6):
        a, tp = tile // 2, tile % 2
        wl.append(ds_read_tr(WT + 4 * tile, TT, 64 * a + 8 * tp))
        wl.append(ds_read_tr(WT + 4 * tile + 2, TT, 64 * a + 8 * tp + 768))
    for tile in range(6):
        w = ds_write_b128(TT + 1, WT + 4 * tile, tile * 3 * 1024)
        w.wr = ("ldsw",)
        wl.append(w)
    wl += unpack_up(UP[0], LACC[0]) + unpack_up(UP[1], LACC[1])
    p1 = []
    for k in range(2):
        p1 += lat_loads(k, P1 + 24 * k, P1 + 24 * k + 12) + lat_advance_global(k)
    pro.extend(weave(wl, p1, 4))
    r1 = round_(1, ["ldsw"])
    A(r1[0])
    stamp(pro)
    stream(pro, lat_frags([(CF[0], LACC[0]), (CF[1], LACC[1])]),
           [(r1[1:], 0, 30), (dma_chunk(2) + dma_chunk(3), 0, 35)])
    pro.extend(lateral_post(LACC[0], None, V_LW[0]) + lat_advance_lds(0))
    pro.extend(lateral_post(LACC[1], None, V_LW[1]) + lat_advance_lds(1))
    A(salu(f"s_mov_b32 s{S_CNT}, 0", [], [S(S_CNT)]))
    stamp(pro)

    def lat_sides(l0, l1):
        nxt = []
        for k in range(2):
            nxt += lat_loads(k, CF[k], UP[k]) + lat_advance_global(k)
        post = lateral_post(LACC[0], UP[0], V_LW[0]) + lat_advance_lds(0) + \
            lateral_post(LACC[1], UP[1], V_LW[1]) + lat_advance_lds(1)
        r = []
        if "--nounpack" not in sys.argv:
            r.append((unpack_up(UP[0], LACC[0]) + unpack_up(UP[1], LACC[1]), max(l0 - 56, 0), l0 - 4))
        if "--noloads" not in sys.argv:
            r.append((nxt, l1 + 1, l1 + int(__import__("os").environ.get("LW", "150"))))
        if "--nopost" not in sys.argv:
            r.append((post, l1 + 12, l1 + 50))
        return r

    def step_tail(b, last=False):
        b.add(salu(f"s_add_u32 s{S_OPREV}, s{S_OROW}, 6144", [S(S_OROW)], [S(S_OPREV)]))
        b.add(salu(f"s_add_u32 s{S_OROW}, s{S_OROW}, {2 * 384 * 192}", [S(S_OROW)], [S(S_OROW)]))
        b.add(valu(f"v_add_u32 v{V_BB}, {2 * ROWB}, v{V_BB}", [V(V_BB)], [V(V_BB)]))
        b.add(salu(f"s_add_u32 s{S_CNT}, s{S_CNT}, 1", [S(S_CNT)], [S(S_CNT)]))
        if not last:
            br = barrier(lgkm0=False)
            br.rd = ("ldsw",)
            b.add(br)
        stamp(b, dyn=True)

    s0 = Block("step0")
    br = barrier(lgkm0=False)
    br.rd = ("ldsw",)
    s0.add(br)
    s0.add(salu(f"s_add_u32 s{S_O1}, s{S_OROW}, 3072", [S(S_OROW)], [S(S_O1)]))

    def tapf(tap):
        return [conv_frag(j, tap // 3, tap % 3, s, ACC[j], tap == 0 and s == 0) for j in range(3) for s in range(3)]

    frs = tapf(0) + lat_frags([(P1, LACC[0]), (P1 + 24, LACC[1])])
    for tap in range(1, 6):
        frs += tapf(tap)
    frs += lat_frags([(CF[0], LACC[0]), (CF[1], LACC[1])])
    for tap in range(6, 9):
        frs += tapf(tap)

    def mkpost():
        return lateral_post(LACC[0], None, V_LW[0]) + lat_advance_lds(0) + \
            lateral_post(LACC[1], None, V_LW[1]) + lat_advance_lds(1)

    def mkloads():
        r = []
        for k in range(2):
            r += lat_loads(k, CF[k], UP[k]) + lat_advance_global(k)
        return r

    sides = [(round_(2, tap_regs(0), 4), 2, 26),
             (unpack_up(P1 + 12, LACC[0]) + unpack_up(P1 + 36, LACC[1]), 1, 24),
             (round_(3, tap_regs(1), 5), 28, 58),
             (mkloads(), 28, 150),
             (mkpost(), 66, 82),
             (round_(4, tap_regs(2) + ["ldsw"], 6), 84, 112),
             (round_(5, tap_regs(3), 7), 116, 141),
             (round_(6, tap_regs(4), 8), 143, 168),
             (unpack_up(UP[0], LACC[0]) + unpack_up(UP[1], LACC[1]), 152, 195),
             (round_(7, tap_regs(5), 9), 172, 200),
             (round_(8, tap_regs(6)), 204, 232),
             (round_(9, tap_regs(7)), 236, 262),
             (mkpost(), 244, 270),
             (mkloads(), 236, 312),
             (conv_epilogue(ACC[0], S_OROW), 306, 313)]
    stream(s0, frs, sides)
    s0.extend(conv_epilogue(ACC[1], S_O1))
    nf = conv_frags(0, ACC[0], extra=2 * ROWB)[:NRING - 1]
    for n, f in enumerate(nf):
        s0.add(ds_read_b128(RING + 4 * n, f.addr, f.off))
    step_tail(s0)

    def step_body(name, lat, last):
        b = Block(name)
        b.add(label(f"L_{name}"))
        b.add(salu(f"s_add_u32 s{S_O1}, s{S_OROW}, 3072", [S(S_OROW)], [S(S_O1)]))
        sides = [(conv_epilogue(ACC[2], S_OPREV), 2, 24)]
        if lat:
            frs = conv_frags(0, ACC[0]) + lat_frags([(CF[0], LACC[0]), (CF[1], LACC[1])]) + \
                conv_frags(1, ACC[1]) + conv_frags(2, ACC[2])
            sides += lat_sides(81, 116)
            sides.append((conv_epilogue(ACC[0], S_OROW), 92, 114))
            sides.append((conv_epilogue(ACC[1], S_O1), 208, 240))
        else:
            frs = conv_frags(0, ACC[0]) + conv_frags(1, ACC[1]) + conv_frags(2, ACC[2])
            sides.append((conv_epilogue(ACC[0], S_OROW), 92, 120))
            sides.append((conv_epilogue(ACC[1], S_O1), 172, 200))
        nextfr = [] if last else conv_frags(0, ACC[0], extra=2 * ROWB)[:NRING - 1]
        stream2(b, frs, sides, nextfr)
        step_tail(b, last)
        return b

    def stream2(b, frs, sides, nextfr):
        D = NRING - 1
        nm = sum(len(f.mk(RING)) for f in frs)
        slots = [[] for _ in range(nm + 1)]
        for ins, lo, hi in sides:
            n = len(ins)
            hi = min(hi, nm - 1)
            for k, x in enumerate(ins):
                pos = lo + ((hi - lo + 1) * k) // n
                slots[min(pos, nm)].append(x)
        nf = len(frs)
        last_use = {}
        for n in range(nf):
            last_use[n % NRING] = n
        issued = D
        nissued = 0
        mi = 0
        for n, f in enumerate(frs):
            ms = f.mk(RING + 4 * (n % NRING))
            for k, m in enumerate(ms):
                b.add(m)
                if k == 0 and issued < nf:
                    g = frs[issued]
                    b.add(ds_read_b128(RING + 4 * (issued % NRING), g.addr, g.off))
                    issued += 1
                if k == len(ms) - 1 and issued >= nf:
                    while nissued < len(nextfr) and last_use[nissued] <= n:
                        g = nextfr[nissued]
                        b.add(ds_read_b128(RING + 4 * nissued, g.addr, g.off))
                        nissued += 1
                for x in slots[mi]:
                    b.add(x)
                mi += 1
        for x in slots[nm]:
            b.add(x)
        assert nissued == len(nextfr)

    la = step_body("loopA", True, False)
    la.add(salu(f"s_cmp_lt_u32 s{S_CNT}, 5", [S(S_CNT)], ["scc"]))
    la.add(I("s_cbranch_scc1 L_loopA", "branch"))
    lb = step_body("step5", False, True)
    lb.extend(conv_epilogue(ACC[2], S_OPREV))
    tail = Block("tail")
    if STAMPS:
        for t in ["s_waitcnt vmcnt(0)", "s_memtime s[98:99]", "s_load_dwordx2 s[60:61], s[0:1], 40",
                  "s_waitcnt lgkmcnt(0)", "s_mov_b32 s85, s98", "s_and_b32 s61, s61, 0xffff",
                  "s_mov_b32 s62, 256", "s_mov_b32 s63, 0x00020000", "s_cmp_lt_u32 s2, 4", "s_cbranch_scc0 L_end",
                  f"s_cmp_eq_u32 s{S_W}, 0", "s_cbranch_scc0 L_end", "s_lshl_b32 s64, s2, 6"] + \
                 [f"v_writelane_b32 v255, s{70 + k}, {k}" for k in range(16)] + \
                 ["v_lshlrev_b32 v254, 2, v0", "v_cmp_gt_u32 vcc, 16, v0", "s_and_saveexec_b64 s[66:67], vcc",
                  "buffer_store_dword v255, v254, s[60:63], s64 offen", "s_waitcnt vmcnt(0)"]:
            tail.add(I(t, "other"))
    tail.add(label("L_end"))
    tail.add(I("s_endpgm", "other"))
    trace = pro.ins + s0.ins + la.ins * 4 + lb.ins + tail.ins
    simulate(trace)
    return render([pro, s0, la, lb, tail])


HDR = open("standalone__detection_seg_fpn_lateral__vision.s.ref").read().split("; Override")[0]


def main():
    body = build()
    txt = HDR + f"""; @launch grid=(256,1,1) block=(256,1,1) lds={LDS_BYTES}
.amdgcn_target "amdgcn-amd-amdhsa--gfx950"
.text
.globl {NAME}
.p2align 8
.type {NAME},@function
{NAME}:
{body}
.section .rodata,"a"
.p2align 6
.amdhsa_kernel {NAME}
  .amdhsa_next_free_vgpr 512
  .amdhsa_next_free_sgpr 102
  .amdhsa_accum_offset 256
  .amdhsa_group_segment_fixed_size 0
  .amdhsa_kernarg_size 56
  .amdhsa_user_sgpr_count 2
  .amdhsa_user_sgpr_kernarg_segment_ptr 1
  .amdhsa_system_sgpr_workgroup_id_x 1
.end_amdhsa_kernel
"""
    out = sys.argv[1] if len(sys.argv) > 1 and not sys.argv[1].startswith("--") else \
        "standalone__detection_seg_fpn_lateral__vision.s"
    open(out, "w").write(txt)


main()
```

```python
import sys
from asmlib import *

NAME = "standalone__detection_seg_fpn_lateral__vision_kernel"
STAMPS = "--stamps" in sys.argv

ROWB = 4800
HALF = 67328
WL_AREA = 2 * HALF
DUMMY = WL_AREA + 18432
LDS_BYTES = 163840
BUF = [6 * ROWB, 6 * ROWB + 18432, HALF + 6 * ROWB, HALF + 6 * ROWB + 18432]

V_BB = 1
V_WL = 2
V_OUTA = 3
V_OUTB = 4
V_OC = [5, 6]
V_OU = [7, 8]
V_LW = [9, 10]
V_LI = [11, 12]
V_LN16 = 13
V_TA = 14
V_TB = 15
RING = 16
NRING = 8
ACC = [48, 60, 72]
LACC = [84, 108]
CF = [132, 156]
UP = [144, 168]
WV = 180
PK = 248
TMP = 84
TT = 254

S_CF, S_PC, S_WL, S_WO, S_OUT = 4, 8, 12, 16, 20
S_W, S_H, S_E, S_X0M, S_Y0M, S_OROW, S_G, S_CNT = 24, 25, 26, 27, 28, 29, 30, 31
S_W4608, S_T0, S_T1, S_DSRC, S_O1, S_O2, S_OPREV = 33, 34, 35, 46, 47, 52, 55
S_H96 = 56


def V(x):
    return f"v{x}"


def S(x):
    return f"s{x}"


def wfrag(tap, s, T):
    f = (tap * 3 + s) * 3 + T
    if f < 64:
        return ("a", 4 * f)
    return ("v", WV + 4 * (f - 64))


_nst = [0]


def stamp(blk, dyn=False):
    if not STAMPS:
        return
    blk.add(I("s_memtime s[98:99]", "other"))
    blk.add(I("s_waitcnt lgkmcnt(0)", "other"))
    if dyn:
        for k in range(1, 7):
            blk.add(I(f"s_cmp_eq_u32 s{S_CNT}, {k}", "other"))
            blk.add(I(f"s_cselect_b32 s{78 + k}, s98, s{78 + k}", "other"))
    else:
        k = _nst[0]
        _nst[0] += 1
        blk.add(I(f"s_mov_b32 s{70 + k}, s98", "other"))


def lat_loads(k, cf, up):
    L = []
    for s in range(3):
        L.append(buf_load4(cf + 4 * s, V_OC[k], S_CF, "0", 64 * s))
    for a in range(3):
        L.append(buf_load4(up + 4 * a, V_OU[k], S_PC, "0", 64 * a))
    return L


def lat_advance_global(k):
    return [valu(f"v_add_u32 v{V_OC[k]}, 0x24000, v{V_OC[k]}", [V(V_OC[k])], [V(V_OC[k])]),
            valu(f"v_add_u32 v{V_OU[k]}, 0x9000, v{V_OU[k]}", [V(V_OU[k])], [V(V_OU[k])])]


def lat_advance_lds(k):
    return [valu(f"v_add_u32 v{V_LW[k]}, v{V_LW[k]}, v{V_LI[k]}", [V(V_LW[k]), V(V_LI[k])], [V(V_LW[k])])]


def unpack_up(up, lacc):
    L = []
    for a in range(3):
        for d in range(4):
            dst = lacc + 8 * a + 2 * d
            L.append(valu(f"v_lshlrev_b32 v{dst}, 16, v{up + 4 * a + d}", [V(up + 4 * a + d)], [V(dst)]))
            L.append(valu(f"v_and_b32 v{dst + 1}, 0xffff0000, v{up + 4 * a + d}", [V(up + 4 * a + d)], [V(dst + 1)]))
    return L


def lateral_post(lacc, up, vlw):
    L = []
    for a in range(3):
        for d in range(4):
            s = lacc + 8 * a + 2 * d
            L.append(valu(f"v_cvt_pk_bf16_f32 v{lacc + 8 * a + d}, v{s}, v{s + 1}", [V(s), V(s + 1)],
                          [V(lacc + 8 * a + d)]))
        w = ds_write_b128(vlw, lacc + 8 * a, a * 1600)
        w.wr = ("ldsw",)
        L.append(w)
    return L


def conv_epilogue(acc, soff):
    L = []
    for d in range(6):
        L.append(valu(f"v_cvt_pk_bf16_f32 v{PK + d}, v{acc + 2 * d}, v{acc + 2 * d + 1}",
                      [V(acc + 2 * d), V(acc + 2 * d + 1)], [V(PK + d)]))
    L.append(buf_store(4, PK, V_OUTA, S_OUT, soff))
    L.append(buf_store(2, PK + 4, V_OUTB, S_OUT, soff))
    return L


class Frag:
    def __init__(self, addr, off, mk):
        self.addr, self.off, self.mk = addr, off, mk


def conv_frag(j, di, dj, s, acc, first, extra=0):
    tap = di * 3 + dj
    off = di * ROWB + s * 1600 + (16 * j + dj) * 16 + extra

    def mk(r):
        out = []
        for T in range(3):
            f, b = wfrag(tap, s, T)
            out.append(mfma(acc + 4 * T, b, r, acc + 4 * T, af=f, first=first))
        return out

    return Frag(V_BB, off, mk)


def conv_frags(j, acc, extra=0):
    fr = []
    for di in range(3):
        for dj in range(3):
            for s in range(3):
                fr.append(conv_frag(j, di, dj, s, acc, len(fr) == 0, extra))
    return fr


def lat_frags(groups):
    fr = []
    for s in range(3):
        for tile in range(6):
            def mk(r, s=s, tile=tile):
                return [mfma(l + 4 * tile, r, cf + 4 * s, l + 4 * tile) for (cf, l) in groups]

            fr.append(Frag(V_WL, (tile * 3 + s) * 1024, mk))
    return fr


def stream(blk, frs, sides, ring=RING, nring=NRING, preloaded=0, nextfr=()):
    allf = list(frs) + list(nextfr)
    D = nring - 1
    issued = preloaded

    def issue():
        nonlocal issued
        if issued < len(allf):
            f = allf[issued]
            blk.add(ds_read_b128(ring + 4 * (issued % nring), f.addr, f.off))
            issued += 1

    while issued < D:
        issue()
    nm = sum(len(f.mk(ring)) for f in frs)
    slots = [[] for _ in range(nm + 1)]
    for ins, lo, hi in sides:
        n = len(ins)
        hi = min(hi, nm - 1)
        for k, x in enumerate(ins):
            pos = lo + ((hi - lo + 1) * k) // n if n else lo
            slots[min(pos, nm)].append(x)
    mi = 0
    for n, f in enumerate(frs):
        ms = f.mk(ring + 4 * (n % nring))
        for k, m in enumerate(ms):
            blk.add(m)
            if k == 0:
                issue()
            for x in slots[mi]:
                blk.add(x)
            mi += 1
    for x in slots[nm]:
        blk.add(x)
    assert len(frs) % nring == 0 or not nextfr, "ring phase must realign when prefetching the next stream"


def dma_chunk(c):
    srd = S_WL if c == 0 else S_WO
    src = 0 if c == 0 else (c - 1) * 18432
    tag = f"dma{c}"
    L = []
    L.append(salu(f"s_add_u32 s{S_DSRC}, s{S_W4608}, {src}", [S(S_W4608)], [S(S_DSRC)]))
    L.append(salu(f"s_add_u32 m0, s{S_W4608}, {BUF[c % 4]}", [S(S_W4608)], ["m0"]))
    for k in range(4):
        L.append(dma4(V_LN16, srd, S_DSRC, 1024 * k, tag))
    L.append(salu(f"s_add_u32 s{S_T1}, s{S_DSRC}, 4096", [S(S_DSRC)], [S(S_T1)]))
    L.append(salu(f"s_add_u32 m0, s{S_W4608}, {BUF[c % 4] + 4096}", [S(S_W4608)], ["m0"]))
    L.append([salu("s_mov_b32 exec_hi, 0", [], ["exec"]),
              dma4(V_LN16, srd, S_T1, 0, tag),
              salu("s_mov_b32 exec_hi, -1", [], ["exec"])])
    return L


def tap_regs(tap):
    r = []
    for s in range(3):
        for T in range(3):
            f, b = wfrag(tap, s, T)
            r += vr(b, 4, f)
    return r


def tr_chunk(c):
    tap = c - 1
    buf = BUF[c % 4]
    ta, tb = TT, TT + 1
    L = []
    L.append(valu(f"v_add_u32 v{ta}, {buf}, v{V_TA}", [V(V_TA)], [V(ta)]))
    L.append(valu(f"v_add_u32 v{tb}, {buf}, v{V_TB}", [V(V_TB)], [V(tb)]))
    for s in range(3):
        for T in range(3):
            f, b = wfrag(tap, s, T)
            if T < 2:
                L.append(ds_read_tr(b, ta, s * 6144 + 8 * T, f))
                L.append(ds_read_tr(b + 2, ta, s * 6144 + 8 * T + 768, f))
            else:
                L.append(ds_read_tr(b, tb, s * 6144, f))
                L.append(ds_read_tr(b + 2, tb, s * 6144 + 768, f))
    return L


def round_(c, prev_regs, dma=None):
    b = barrier(lgkm0=False, waitfor=[f"dma{c}"])
    b.rd = tuple(prev_regs)
    tr = tr_chunk(c)
    if dma is None:
        return [b] + tr
    d = []
    for x in (dma if isinstance(dma, (list, tuple)) else [dma]):
        if x <= 9:
            d += dma_chunk(x)
    out = [b]
    while tr or d:
        out += tr[:2]
        tr = tr[2:]
        out += d[:1]
        d = d[1:]
    return out


def weave(main, side, every):
    out = []
    side = list(side)
    for k, x in enumerate(main):
        out.append(x)
        if k % every == every - 1 and side:
            out.append(side.pop(0))
    return out + side


def build():
    pro = Block("prologue")
    A = pro.add
    A(salu("s_cmp_ge_u32 s2, 0x100", ["s2"], ["scc"]))
    A(I("s_cbranch_scc1 L_end", "branch"))
    stamp(pro)
    A(I("s_load_dwordx4 s[36:39], s[0:1], 0", "smem"))
    A(I("s_load_dwordx4 s[40:43], s[0:1], 16", "smem"))
    A(I("s_load_dwordx2 s[44:45], s[0:1], 32", "smem"))
    lane, q, t0, t1, l16, q16, mw, idx, dr, kap, y, x, t2 = [TMP + i for i in range(13)]
    A(valu(f"v_and_b32 v{lane}, 63, v0", ["v0"], [V(lane)]))
    A(valu(f"v_lshrrev_b32 v{t0}, 6, v0", ["v0"], [V(t0)]))
    A(valu(f"v_and_b32 v{l16}, 15, v0", ["v0"], [V(l16)]))
    A(valu(f"v_readfirstlane_b32 s{S_W}, v{t0}", [V(t0)], [S(S_W)]))
    A(valu(f"v_lshrrev_b32 v{q}, 4, v{lane}", [V(lane)], [V(q)]))
    A(valu(f"v_lshlrev_b32 v{q16}, 4, v{q}", [V(q)], [V(q16)]))
    A(valu(f"v_lshlrev_b32 v{V_LN16}, 4, v{lane}", [V(lane)], [V(V_LN16)]))
    A(valu(f"v_add_u32 v{V_WL}, {WL_AREA}, v{V_LN16}", [V(V_LN16)], [V(V_WL)]))
    A(valu(f"v_and_b32 v{t0}, 1, v{q}", [V(q)], [V(t0)]))
    A(valu(f"v_mul_u32_u24 v{mw}, {HALF}, v{t0}", [V(t0)], [V(mw)]))
    A(valu(f"v_lshrrev_b32 v{t0}, 1, v{q}", [V(q)], [V(t0)]))
    A(valu(f"v_mul_u32_u24 v{t0}, 800, v{t0}", [V(t0)], [V(t0)]))
    A(valu(f"v_add_u32 v{mw}, v{mw}, v{t0}", [V(mw), V(t0)], [V(mw)]))
    A(salu(f"s_and_b32 s{S_H}, s{S_W}, 1", [S(S_W)], [S(S_H)]))
    A(salu(f"s_lshr_b32 s{S_E}, s{S_W}, 1", [S(S_W)], [S(S_E)]))
    A(salu(f"s_and_b32 s{S_T0}, s2, 7", ["s2"], [S(S_T0)]))
    A(salu(f"s_mul_i32 s{S_X0M}, s{S_T0}, 48", [S(S_T0)], [S(S_X0M)]))
    A(salu(f"s_lshr_b32 s{S_T0}, s2, 3", ["s2"], [S(S_T0)]))
    A(salu(f"s_mul_i32 s{S_Y0M}, s{S_T0}, 12", [S(S_T0)], [S(S_Y0M)]))
    A(salu(f"s_add_u32 s{S_T0}, s{S_Y0M}, s{S_E}", [S(S_Y0M), S(S_E)], [S(S_T0)]))
    A(salu(f"s_mul_i32 s{S_T0}, s{S_T0}, 384", [S(S_T0)], [S(S_T0)]))
    A(salu(f"s_add_u32 s{S_T0}, s{S_T0}, s{S_X0M}", [S(S_T0), S(S_X0M)], [S(S_T0)]))
    A(salu(f"s_mul_i32 s{S_OROW}, s{S_T0}, 192", [S(S_T0)], [S(S_OROW)]))
    A(salu(f"s_sub_u32 s{S_X0M}, s{S_X0M}, 1", [S(S_X0M)], [S(S_X0M)]))
    A(salu(f"s_sub_u32 s{S_Y0M}, s{S_Y0M}, 1", [S(S_Y0M)], [S(S_Y0M)]))
    A(salu(f"s_mul_i32 s{S_W4608}, s{S_W}, 4608", [S(S_W)], [S(S_W4608)]))
    A(salu(f"s_mul_i32 s{S_H96}, s{S_H}, 96", [S(S_H)], [S(S_H96)]))
    A(salu(f"s_mov_b32 s53, 384", [], ["s53"]))
    A(salu(f"s_mov_b32 s54, 100", [], ["s54"]))
    for k in range(2):
        A(salu(f"s_lshl_b32 s{S_T0}, s{S_W}, 4", [S(S_W)], [S(S_T0)]))
        if k:
            A(salu(f"s_add_u32 s{S_T0}, s{S_T0}, 64", [S(S_T0)], [S(S_T0)]))
        A(valu(f"v_add_u32 v{idx}, s{S_T0}, v{l16}", [S(S_T0), V(l16)], [V(idx)]))
        A(valu(f"v_cmp_lt_u32 vcc, 49, v{idx}", [V(idx)], ["vcc"]))
        A(valu(f"v_cmp_gt_u32 s[50:51], s54, v{idx}", [V(idx), "s54"], ["s50", "s51"]))
        A(valu(f"v_cndmask_b32 v{dr}, 0, 1, vcc", ["vcc"], [V(dr)]))
        A(valu(f"v_mul_u32_u24 v{t0}, 50, v{dr}", [V(dr)], [V(t0)]))
        A(valu(f"v_sub_u32 v{kap}, v{idx}, v{t0}", [V(idx), V(t0)], [V(kap)]))
        A(valu(f"v_add_u32 v{y}, s{S_Y0M}, v{dr}", [S(S_Y0M), V(dr)], [V(y)]))
        A(valu(f"v_add_u32 v{x}, s{S_X0M}, v{kap}", [S(S_X0M), V(kap)], [V(x)]))
        A(valu(f"v_cmp_gt_u32 s[48:49], s53, v{x}", [V(x), "s53"], ["s48", "s49"]))
        A(valu(f"v_mad_i32_i24 v{t0}, v{y}, s53, v{x}", [V(y), "s53", V(x)], [V(t0)]))
        A(valu(f"v_mul_i32_i24 v{t0}, 0xc0, v{t0}", [V(t0)], [V(t0)]))
        A(valu(f"v_add_u32 v{t0}, v{t0}, v{q16}", [V(t0), V(q16)], [V(t0)]))
        A(salu("s_and_b64 vcc, s[48:49], s[50:51]", ["s48", "s49", "s50", "s51"], ["vcc"]))
        A(valu(f"v_ashrrev_i32 v{y}, 1, v{y}", [V(y)], [V(y)]))
        A(valu(f"v_ashrrev_i32 v{x}, 1, v{x}", [V(x)], [V(x)]))
        A(valu(f"v_mul_i32_i24 v{t1}, 0xc0, v{y}", [V(y)], [V(t1)]))
        A(valu(f"v_add_u32 v{t1}, v{t1}, v{x}", [V(t1), V(x)], [V(t1)]))
        A(valu(f"v_mul_i32_i24 v{t1}, 0xc0, v{t1}", [V(t1)], [V(t1)]))
        A(valu(f"v_add_u32 v{t1}, v{t1}, v{q16}", [V(t1), V(q16)], [V(t1)]))
        A(valu(f"v_mov_b32 v{t2}, 0x80000000", [], [V(t2)]))
        A(valu(f"v_cndmask_b32 v{V_OC[k]}, v{t2}, v{t0}, vcc", [V(t2), V(t0), "vcc"], [V(V_OC[k])]))
        A(valu(f"v_cndmask_b32 v{V_OU[k]}, v{t2}, v{t1}, vcc", [V(t2), V(t1), "vcc"], [V(V_OU[k])]))
        A(valu(f"v_mul_u32_u24 v{t0}, {ROWB}, v{dr}", [V(dr)], [V(t0)]))
        A(valu(f"v_lshl_add_u32 v{t0}, v{kap}, 4, v{t0}", [V(kap), V(t0)], [V(t0)]))
        A(valu(f"v_add_u32 v{t0}, v{t0}, v{mw}", [V(t0), V(mw)], [V(t0)]))
        A(valu(f"v_mov_b32 v{t2}, {DUMMY}", [], [V(t2)]))
        A(valu(f"v_cndmask_b32 v{V_LW[k]}, v{t2}, v{t0}, s[50:51]", [V(t2), V(t0), "s50", "s51"], [V(V_LW[k])]))
        A(valu(f"v_mov_b32 v{t2}, {2 * ROWB}", [], [V(t2)]))
        A(valu(f"v_cndmask_b32 v{V_LI[k]}, 0, v{t2}, s[50:51]", [V(t2), "s50", "s51"], [V(V_LI[k])]))
    if "--fine" in sys.argv:
        stamp(pro)
    A(I("s_waitcnt lgkmcnt(0)", "other"))
    if "--fine" in sys.argv:
        stamp(pro)

    def srd(srd_, lo, size):
        A(salu(f"s_mov_b32 s{srd_}, s{lo}", [S(lo)], [S(srd_)]))
        A(salu(f"s_and_b32 s{srd_ + 1}, s{lo + 1}, 0xffff", [S(lo + 1)], [S(srd_ + 1)]))
        A(salu(f"s_mov_b32 s{srd_ + 2}, {size}", [], [S(srd_ + 2)]))
        A(salu(f"s_mov_b32 s{srd_ + 3}, 0x00020000", [], [S(srd_ + 3)]))

    srd(S_WL, 40, 18432)
    pro.extend(dma_chunk(0))
    srd(S_WO, 42, 165888)
    A(salu(f"s_lshr_b32 s{S_T0}, s2, 3", ["s2"], [S(S_T0)]))
    A(salu(f"s_and_b32 s{S_T0}, s{S_T0}, 7", [S(S_T0)], [S(S_T0)]))
    A(salu(f"s_lshl_b32 s{S_T0}, s{S_T0}, 2", [S(S_T0)], [S(S_T0)]))
    A(salu(f"s_add_u32 s{S_T0}, s{S_T0}, s{S_W}", [S(S_T0), S(S_W)], [S(S_T0)]))
    A(salu(f"s_mul_i32 s{S_T0}, s{S_T0}, 5248", [S(S_T0)], [S(S_T0)]))
    A(valu(f"v_lshlrev_b32 v{t0}, 7, v{lane}", [V(lane)], [V(t0)]))
    A(I(f"buffer_load_dword v{PK}, v{t0}, s[{S_WO}:{S_WO + 3}], s{S_T0} offen", "vld", [V(t0), S(S_T0)], [V(PK)]))
    srd(S_CF, 36, 28311552)
    srd(S_PC, 38, 7077888)
    P1 = WV
    for k in range(2):
        pro.extend(lat_loads(k, CF[k], UP[k]))
        pro.extend(lat_advance_global(k))
    pro.extend(dma_chunk(1))
    if "--fine" in sys.argv:
        stamp(pro)
    srd(S_OUT, 44, 28311552)
    A(salu(f"s_mul_i32 s{S_T0}, s{S_E}, {ROWB}", [S(S_E)], [S(S_T0)]))
    A(valu(f"v_lshl_add_u32 v{V_BB}, v{l16}, 4, v{mw}", [V(l16), V(mw)], [V(V_BB)]))
    A(valu(f"v_add_u32 v{V_BB}, s{S_T0}, v{V_BB}", [S(S_T0), V(V_BB)], [V(V_BB)]))
    A(valu(f"v_mul_u32_u24 v{t0}, 192, v{l16}", [V(l16)], [V(t0)]))
    A(valu(f"v_add_u32 v{t0}, s{S_H96}, v{t0}", [S(S_H96), V(t0)], [V(t0)]))
    A(valu(f"v_add_u32 v{V_OUTA}, v{t0}, v{q16}", [V(t0), V(q16)], [V(V_OUTA)]))
    A(valu(f"v_lshl_add_u32 v{V_OUTB}, v{q}, 3, v{t0}", [V(q), V(t0)], [V(V_OUTB)]))
    A(valu(f"v_add_u32 v{V_OUTB}, 64, v{V_OUTB}", [V(V_OUTB)], [V(V_OUTB)]))
    A(valu(f"v_bfe_u32 v{t0}, v{lane}, 2, 2", [V(lane)], [V(t0)]))
    A(valu(f"v_lshl_add_u32 v{t0}, v{q}, 3, v{t0}", [V(q), V(t0)], [V(t0)]))
    A(valu(f"v_mul_u32_u24 v{t0}, 192, v{t0}", [V(t0)], [V(t0)]))
    A(valu(f"v_and_b32 v{t1}, 3, v{lane}", [V(lane)], [V(t1)]))
    A(valu(f"v_lshl_add_u32 v{t2}, v{t1}, 4, v{t0}", [V(t1), V(t0)], [V(t2)]))
    A(valu(f"v_add_u32 v{V_TA}, s{S_H96}, v{t2}", [S(S_H96), V(t2)], [V(V_TA)]))
    A(valu(f"v_lshl_add_u32 v{V_TB}, v{t1}, 3, v{t0}", [V(t1), V(t0)], [V(V_TB)]))
    A(valu(f"v_add_u32 v{V_TB}, s{S_H96}, v{V_TB}", [S(S_H96), V(V_TB)], [V(V_TB)]))
    A(valu(f"v_add_u32 v{V_TB}, 64, v{V_TB}", [V(V_TB)], [V(V_TB)]))
    A(salu(f"s_min_u32 s{S_T0}, s{S_W}, 2", [S(S_W)], [S(S_T0)]))
    A(salu(f"s_mul_i32 s{S_T1}, s{S_T0}, 6144", [S(S_T0)], [S(S_T1)]))
    A(salu(f"s_add_u32 s{S_T1}, s{S_T1}, {BUF[0]}", [S(S_T1)], [S(S_T1)]))
    A(valu(f"v_add_u32 v{TT}, s{S_T1}, v{t2}", [S(S_T1), V(t2)], [V(TT)]))
    A(salu(f"s_lshl_b32 s{S_T1}, s{S_T0}, 10", [S(S_T0)], [S(S_T1)]))
    A(valu(f"v_add_u32 v{TT + 1}, s{S_T1}, v{V_WL}", [S(S_T1), V(V_WL)], [V(TT + 1)]))
    stamp(pro)
    A(barrier(lgkm0=False, waitfor=["dma0"]))
    WT = RING
    wl = []
    for tile in range(6):
        a, tp = tile // 2, tile % 2
        wl.append(ds_read_tr(WT + 4 * tile, TT, 64 * a + 8 * tp))
        wl.append(ds_read_tr(WT + 4 * tile + 2, TT, 64 * a + 8 * tp + 768))
    for tile in range(6):
        w = ds_write_b128(TT + 1, WT + 4 * tile, tile * 3 * 1024)
        w.wr = ("ldsw",)
        wl.append(w)
    wl += unpack_up(UP[0], LACC[0]) + unpack_up(UP[1], LACC[1])
    p1 = []
    for k in range(2):
        p1 += lat_loads(k, P1 + 24 * k, P1 + 24 * k + 12) + lat_advance_global(k)
    pro.extend(weave(wl, p1, 4))
    r1 = round_(1, ["ldsw"])
    A(r1[0])
    stamp(pro)
    stream(pro, lat_frags([(CF[0], LACC[0]), (CF[1], LACC[1])]),
           [(r1[1:], 0, 30), (dma_chunk(2) + dma_chunk(3), 0, 35)])
    pro.extend(lateral_post(LACC[0], None, V_LW[0]) + lat_advance_lds(0))
    pro.extend(lateral_post(LACC[1], None, V_LW[1]) + lat_advance_lds(1))
    A(salu(f"s_mov_b32 s{S_CNT}, 0", [], [S(S_CNT)]))
    stamp(pro)

    def lat_sides(l0, l1):
        nxt = []
        for k in range(2):
            nxt += lat_loads(k, CF[k], UP[k]) + lat_advance_global(k)
        post = lateral_post(LACC[0], UP[0], V_LW[0]) + lat_advance_lds(0) + \
            lateral_post(LACC[1], UP[1], V_LW[1]) + lat_advance_lds(1)
        r = []
        if "--nounpack" not in sys.argv:
            r.append((unpack_up(UP[0], LACC[0]) + unpack_up(UP[1], LACC[1]), max(l0 - 56, 0), l0 - 4))
        if "--noloads" not in sys.argv:
            r.append((nxt, l1 + 1, l1 + int(__import__("os").environ.get("LW", "150"))))
        if "--nopost" not in sys.argv:
            r.append((post, l1 + 12, l1 + 50))
        return r

    def step_tail(b, last=False):
        b.add(salu(f"s_add_u32 s{S_OPREV}, s{S_OROW}, 6144", [S(S_OROW)], [S(S_OPREV)]))
        b.add(salu(f"s_add_u32 s{S_OROW}, s{S_OROW}, {2 * 384 * 192}", [S(S_OROW)], [S(S_OROW)]))
        b.add(valu(f"v_add_u32 v{V_BB}, {2 * ROWB}, v{V_BB}", [V(V_BB)], [V(V_BB)]))
        b.add(salu(f"s_add_u32 s{S_CNT}, s{S_CNT}, 1", [S(S_CNT)], [S(S_CNT)]))
        if not last:
            br = barrier(lgkm0=False)
            br.rd = ("ldsw",)
            b.add(br)
        stamp(b, dyn=True)

    s0 = Block("step0")
    br = barrier(lgkm0=False)
    br.rd = ("ldsw",)
    s0.add(br)
    s0.add(salu(f"s_add_u32 s{S_O1}, s{S_OROW}, 3072", [S(S_OROW)], [S(S_O1)]))

    def tapf(tap):
        return [conv_frag(j, tap // 3, tap % 3, s, ACC[j], tap == 0 and s == 0) for j in range(3) for s in range(3)]

    frs = tapf(0) + lat_frags([(P1, LACC[0]), (P1 + 24, LACC[1])])
    for tap in range(1, 6):
        frs += tapf(tap)
    frs += lat_frags([(CF[0], LACC[0]), (CF[1], LACC[1])])
    for tap in range(6, 9):
        frs += tapf(tap)

    def mkpost():
        return lateral_post(LACC[0], None, V_LW[0]) + lat_advance_lds(0) + \
            lateral_post(LACC[1], None, V_LW[1]) + lat_advance_lds(1)

    def mkloads():
        r = []
        for k in range(2):
            r += lat_loads(k, CF[k], UP[k]) + lat_advance_global(k)
        return r

    sides = [(round_(2, tap_regs(0), [4, 5]), 2, 26),
             (unpack_up(P1 + 12, LACC[0]) + unpack_up(P1 + 36, LACC[1]), 1, 24),
             (round_(3, tap_regs(1), 6), 28, 58),
             (mkloads(), 28, 150),
             (mkpost(), 66, 82),
             (round_(4, tap_regs(2) + ["ldsw"], 7), 84, 112),
             (round_(5, tap_regs(3), 8), 116, 141),
             (round_(6, tap_regs(4), 9), 143, 168),
             (unpack_up(UP[0], LACC[0]) + unpack_up(UP[1], LACC[1]), 152, 195),
             (round_(7, tap_regs(5)), 172, 200),
             (round_(8, tap_regs(6)), 204, 232),
             (round_(9, tap_regs(7)), 236, 262),
             (mkpost(), 244, 270),
             (mkloads(), 236, 312),
             (conv_epilogue(ACC[0], S_OROW), 306, 313)]
    stream(s0, frs, sides)
    s0.extend(conv_epilogue(ACC[1], S_O1))
    nf = conv_frags(0, ACC[0], extra=2 * ROWB)[:NRING - 1]
    for n, f in enumerate(nf):
        s0.add(ds_read_b128(RING + 4 * n, f.addr, f.off))
    step_tail(s0)

    def step_body(name, lat, last):
        b = Block(name)
        b.add(label(f"L_{name}"))
        b.add(salu(f"s_add_u32 s{S_O1}, s{S_OROW}, 3072", [S(S_OROW)], [S(S_O1)]))
        sides = [(conv_epilogue(ACC[2], S_OPREV), 2, 24)]
        if lat:
            frs = conv_frags(0, ACC[0]) + lat_frags([(CF[0], LACC[0]), (CF[1], LACC[1])]) + \
                conv_frags(1, ACC[1]) + conv_frags(2, ACC[2])
            sides += lat_sides(81, 116)
            sides.append((conv_epilogue(ACC[0], S_OROW), 92, 114))
            sides.append((conv_epilogue(ACC[1], S_O1), 208, 240))
        else:
            frs = conv_frags(0, ACC[0]) + conv_frags(1, ACC[1]) + conv_frags(2, ACC[2])
            sides.append((conv_epilogue(ACC[0], S_OROW), 92, 120))
            sides.append((conv_epilogue(ACC[1], S_O1), 172, 200))
        nextfr = [] if last else conv_frags(0, ACC[0], extra=2 * ROWB)[:NRING - 1]
        stream2(b, frs, sides, nextfr)
        step_tail(b, last)
        return b

    def stream2(b, frs, sides, nextfr):
        D = NRING - 1
        nm = sum(len(f.mk(RING)) for f in frs)
        slots = [[] for _ in range(nm + 1)]
        for ins, lo, hi in sides:
            n = len(ins)
            hi = min(hi, nm - 1)
            for k, x in enumerate(ins):
                pos = lo + ((hi - lo + 1) * k) // n
                slots[min(pos, nm)].append(x)
        nf = len(frs)
        last_use = {}
        for n in range(nf):
            last_use[n % NRING] = n
        issued = D
        nissued = 0
        mi = 0
        for n, f in enumerate(frs):
            ms = f.mk(RING + 4 * (n % NRING))
            for k, m in enumerate(ms):
                b.add(m)
                if k == 0 and issued < nf:
                    g = frs[issued]
                    b.add(ds_read_b128(RING + 4 * (issued % NRING), g.addr, g.off))
                    issued += 1
                if k == len(ms) - 1 and issued >= nf:
                    while nissued < len(nextfr) and last_use[nissued] <= n:
                        g = nextfr[nissued]
                        b.add(ds_read_b128(RING + 4 * nissued, g.addr, g.off))
                        nissued += 1
                for x in slots[mi]:
                    b.add(x)
                mi += 1
        for x in slots[nm]:
            b.add(x)
        assert nissued == len(nextfr)

    la = step_body("loopA", True, False)
    la.add(salu(f"s_cmp_lt_u32 s{S_CNT}, 5", [S(S_CNT)], ["scc"]))
    la.add(I("s_cbranch_scc1 L_loopA", "branch"))
    lb = step_body("step5", False, True)
    lb.extend(conv_epilogue(ACC[2], S_OPREV))
    tail = Block("tail")
    if STAMPS:
        for t in ["s_waitcnt vmcnt(0)", "s_memtime s[98:99]", "s_load_dwordx2 s[60:61], s[0:1], 40",
                  "s_waitcnt lgkmcnt(0)", "s_mov_b32 s85, s98", "s_and_b32 s61, s61, 0xffff",
                  "s_mov_b32 s62, 256", "s_mov_b32 s63, 0x00020000", "s_cmp_lt_u32 s2, 4", "s_cbranch_scc0 L_end",
                  f"s_cmp_eq_u32 s{S_W}, 0", "s_cbranch_scc0 L_end", "s_lshl_b32 s64, s2, 6"] + \
                 [f"v_writelane_b32 v255, s{70 + k}, {k}" for k in range(16)] + \
                 ["v_lshlrev_b32 v254, 2, v0", "v_cmp_gt_u32 vcc, 16, v0", "s_and_saveexec_b64 s[66:67], vcc",
                  "buffer_store_dword v255, v254, s[60:63], s64 offen", "s_waitcnt vmcnt(0)"]:
            tail.add(I(t, "other"))
    tail.add(label("L_end"))
    tail.add(I("s_endpgm", "other"))
    trace = pro.ins + s0.ins + la.ins * 4 + lb.ins + tail.ins
    simulate(trace)
    return render([pro, s0, la, lb, tail])


HDR = open("standalone__detection_seg_fpn_lateral__vision.s.ref").read().split("; Override")[0]


def main():
    body = build()
    txt = HDR + f"""; @launch grid=(256,1,1) block=(256,1,1) lds={LDS_BYTES}
.amdgcn_target "amdgcn-amd-amdhsa--gfx950"
.text
.globl {NAME}
.p2align 8
.type {NAME},@function
{NAME}:
{body}
.section .rodata,"a"
.p2align 6
.amdhsa_kernel {NAME}
  .amdhsa_next_free_vgpr 512
  .amdhsa_next_free_sgpr 102
  .amdhsa_accum_offset 256
  .amdhsa_group_segment_fixed_size 0
  .amdhsa_kernarg_size 56
  .amdhsa_user_sgpr_count 2
  .amdhsa_user_sgpr_kernarg_segment_ptr 1
  .amdhsa_system_sgpr_workgroup_id_x 1
.end_amdhsa_kernel
"""
    out = sys.argv[1] if len(sys.argv) > 1 and not sys.argv[1].startswith("--") else \
        "standalone__detection_seg_fpn_lateral__vision.s"
    open(out, "w").write(txt)


main()
```
